```python
import torch

def _softmax(x, axis=-1):
    return torch.softmax(x, dim=axis)

def _gelu(x):
    return torch.nn.functional.gelu(x, approximate='tanh')

def _silu(x):
    return torch.nn.functional.silu(x)

def _sigmoid(x):
    return torch.sigmoid(x)

def _layernorm(x, axis=-1, eps=1e-05):
    m = x.mean(dim=axis, keepdim=True)
    v = x.var(dim=axis, keepdim=True, unbiased=False)
    return (x - m) / torch.sqrt(v + eps)

def _scatter_add(tgt, idx, src, axis=0):
    return tgt.clone().index_add_(axis, idx, src)

def _segment_sum(src, seg, n):
    out = torch.zeros((n,) + src.shape[1:], dtype=src.dtype)
    return out.index_add_(0, seg, src)

def _pad(x, pw):
    flat = tuple((v for pair in reversed(pw) for v in pair))
    return torch.nn.functional.pad(x, flat)
kernel_name = 'standalone__tree_speculative_verify_tree_attention_over_candidate_token_tree__decode'

def setup_inputs():

    _w = lambda a: (lambda t: t.to(torch.bfloat16) if t.is_floating_point() else t)(torch.as_tensor(a))
    B, Hq, Hkv, T, C, D = (1, 32, 16, 1, 32768, 128)
    tree_mask = torch.zeros((B, T, T), dtype=float)
    for b in range(B):
        parent = torch.zeros(T, dtype=torch.int64)
        for i in range(1, T):
            parent[i] = int(torch.randint(0, i, (1,)).item())
        for i in range(T):
            j = i
            tree_mask[b, i, j] = 1.0
            while j > 0:
                j = parent[j]
                tree_mask[b, i, j] = 1.0
    return {'q': _w((lambda *s: torch.randn(*s, dtype=torch.bfloat16) * 0.8)(B, Hq, T, D)), 'k_cache': _w((lambda *s: torch.randn(*s, dtype=torch.bfloat16) * 0.8)(B, Hkv, C, D)), 'v_cache': _w((lambda *s: torch.randn(*s, dtype=torch.bfloat16) * 0.05)(B, Hkv, C, D)), 'k_tree': _w((lambda *s: torch.randn(*s, dtype=torch.bfloat16) * 0.8)(B, Hkv, T, D)), 'v_tree': _w((lambda *s: torch.randn(*s, dtype=torch.bfloat16) * 0.05)(B, Hkv, T, D)), 'tree_mask': _w(tree_mask)}

def reference(q, k_cache, v_cache, k_tree, v_tree, tree_mask):
    B, Hq, T, D = q.shape
    Hkv, C = (k_cache.shape[1], k_cache.shape[2])
    rep = Hq // Hkv
    kc = (lambda x, n, axis: torch.repeat_interleave(x, n, dim=axis))(k_cache, rep, axis=1)
    vc = (lambda x, n, axis: torch.repeat_interleave(x, n, dim=axis))(v_cache, rep, axis=1)
    kt = (lambda x, n, axis: torch.repeat_interleave(x, n, dim=axis))(k_tree, rep, axis=1)
    vt = (lambda x, n, axis: torch.repeat_interleave(x, n, dim=axis))(v_tree, rep, axis=1)
    k = torch.concatenate([kc, kt], axis=2)
    v = torch.concatenate([vc, vt], axis=2)
    scale = D ** (-0.5)
    scores = torch.einsum('bhqd,bhkd->bhqk', q, k) * scale
    ctx_mask = torch.ones((B, 1, T, C), dtype=scores.dtype)
    tm = tree_mask[:, None, :, :].clone()
    full_mask = torch.concatenate([ctx_mask, tm], axis=-1)
    scores = scores + (1.0 - full_mask) * -1000000000.0
    p = _softmax(scores, axis=-1)
    return torch.einsum('bhqk,bhkd->bhqd', p, v)
```

```python
import sys, argparse

KNAME = "standalone__tree_speculative_verify_tree_attention_over_candidate_token_tree__decode_kernel"

HEADER = """; Kernarg layout for this problem (72 bytes, ptrs only, base s[0:1]):
"""

def gen(NW=8, S=16, R=2, pol="nt", mode="C", ldsmin=0, headmajor=True, klayout="quad", stamp=False):
    NWG = 16 * S
    TPW = 2048 // (S * NW)
    assert TPW % R == 0 and TPW >= R
    iters = TPW // R
    lds = max(NW * 1536, ldsmin)
    o = []
    e = o.append
    e(HEADER.rstrip("\n"))
    e(f"; @launch grid=({NWG},1,1) block=({NW*64},1,1) lds={lds}")
    e('.amdgcn_target "amdgcn-amd-amdhsa--gfx950"')
    e(".text")
    e(f".globl {KNAME}")
    e(".p2align 8")
    e(f".type {KNAME},@function")
    e(f"{KNAME}:")
    vLane, vKoff, vVoff = 1, 2, 3
    vQ = 4
    vM = 8
    vC, vm, vl, vT = 12, 13, 14, 15
    vO = 16
    vS = 20
    vZ = 36
    vA, vB, vX, vY = 40, 41, 42, 43
    vT0 = 44
    vRing = 48
    def vK(r): return vRing + 32 * r
    def vV(r): return vRing + 32 * r + 16
    nvgpr = max(vRing + 32 * R, 16 + 6 * S if S <= 16 else 0, 112)
    rr = lambda a, n: f"v[{a}:{a+n-1}]"
    sHead, sSplit, sWave = 22, 23, 3
    sOff, sCnt = 32, 33
    logS = S.bit_length() - 1
    def st(k):
        if stamp:
            e(f"    s_memrealtime s[{60+2*k}:{61+2*k}]")
    def stflush(label):
        if not stamp: return
        e("    s_waitcnt lgkmcnt(0)")
        e(f"    s_mul_i32 s58, s2, {NW}")
        e(f"    s_add_u32 s58, s58, s{sWave}")
        e(f"    s_lshl_b32 s58, s58, 6")
        e(f"    s_add_u32 s58, s58, 0x100000")
        e(f"    v_mov_b32 v100, s58")
        for k in range(16):
            e(f"    v_mov_b32 v{80+k}, s{60+k}")
        e("    s_mov_b64 exec, 1")
        for k in range(4):
            e(f"    global_store_dwordx4 v100, v[{80+4*k}:{83+4*k}], s[20:21] offset:{16*k}")
        e("    s_mov_b64 exec, -1")
    if stamp:
        for k in range(60, 76):
            e(f"    s_mov_b32 s{k}, 0")
    st(0)
    e("    s_load_dwordx16 s[4:19], s[0:1], 0")
    e("    s_load_dwordx2 s[20:21], s[0:1], 64")
    e(f"    s_cmp_ge_u32 s2, {NWG}")
    e("    s_cbranch_scc1 L_end")
    e(f"    v_lshrrev_b32 v{vT}, 6, v0")
    e(f"    v_and_b32 v{vLane}, 63, v0")
    e(f"    v_readfirstlane_b32 s{sWave}, v{vT}")
    if headmajor:
        e(f"    s_lshr_b32 s{sHead}, s2, {logS}")
        e(f"    s_and_b32 s{sSplit}, s2, {S-1}")
    else:
        e(f"    s_and_b32 s{sHead}, s2, 15")
        e(f"    s_lshr_b32 s{sSplit}, s2, 4")
    e(f"    v_lshlrev_b32 v{vVoff}, 4, v{vLane}            ; lane*16")
    e(f"    v_lshrrev_b32 v{vX}, 4, v{vLane}               ; g")
    e(f"    v_and_b32 v{vY}, 3, v{vLane}                   ; j4")
    e(f"    v_lshlrev_b32 v{vX}, 6, v{vX}                  ; g*64")
    e(f"    v_lshl_add_u32 v{vX}, v{vY}, 4, v{vX}          ; g*64 + j4*16")
    e(f"    v_bfe_u32 v{vY}, v{vLane}, 2, 2                ; m")
    e(f"    v_lshl_add_u32 v{vKoff}, v{vY}, 8, v{vX}       ; m*256 + g*64 + j4*16")
    if mode == "A":
        e(f"    s_mul_i32 s{sOff}, s{sSplit}, {NW}")
        e(f"    s_add_u32 s{sOff}, s{sOff}, s{sWave}")
        e(f"    s_mul_i32 s{sOff}, s{sOff}, {TPW*4096}")
        stride = 4096
    elif mode == "B":
        e(f"    s_mul_i32 s{sOff}, s{sSplit}, {NW}")
        e(f"    s_add_u32 s{sOff}, s{sOff}, s{sWave}")
        e(f"    s_lshl_b32 s{sOff}, s{sOff}, 12")
        stride = 4096 * NW * S
    else:
        e(f"    s_mul_i32 s{sOff}, s{sSplit}, {NW*TPW}")
        e(f"    s_add_u32 s{sOff}, s{sOff}, s{sWave}")
        e(f"    s_lshl_b32 s{sOff}, s{sOff}, 12")
        stride = 4096 * NW
    e(f"    s_lshl_b32 s34, s{sHead}, 23")
    e(f"    s_lshl_b32 s35, s{sHead}, 8                    ; head * 256")
    e("    s_mov_b32 s26, 0x800000")
    e("    s_mov_b32 s27, 0x20000")
    e("    s_mov_b32 s30, 0x800000")
    e("    s_mov_b32 s31, 0x20000")
    e(f"    v_add_u32 v{vA}, s35, v{vX}")
    e(f"    v_bfe_u32 v{vY}, v{vLane}, 3, 1                ; h (p layout)")
    e(f"    v_lshl_add_u32 v{vB}, v{vY}, 8, v{vA}")
    e(f"    v_add_u32 v{vB}, s35, v{vB}                    ; q offset")
    e(f"    v_and_b32 v{vX}, 15, v{vLane}")
    e(f"    v_bfe_u32 v{vY}, v{vLane}, 4, 1")
    e(f"    v_lshlrev_b32 v{vX}, 4, v{vX}")
    e(f"    v_lshl_add_u32 v{vX}, v{vY}, 3, v{vX}          ; 16c + 8*(G&1)")
    e(f"    v_add_u32 v{vY}, s35, v{vX}")
    e(f"    v_mov_b32 v{vT}, 0")
    e("    s_waitcnt lgkmcnt(0)")
    st(1)
    e(f"    s_add_u32 s24, s6, s34")
    e(f"    s_addc_u32 s25, s7, 0")
    e(f"    global_load_dwordx4 {rr(vQ,4)}, v{vB}, s[4:5]")
    e(f"    global_load_dwordx4 {rr(vS,4)}, v{vA}, s[10:11]")
    e(f"    global_load_dwordx2 {rr(vS+4,2)}, v{vY}, s[12:13]")
    e(f"    global_load_ushort v{vS+6}, v{vT}, s[14:15]")
    e(f"    s_add_u32 s28, s8, s34")
    e(f"    s_addc_u32 s29, s9, 0")
    def loadK(r):
        for i in range(4):
            off = f" offset:{1024*i}" if i else ""
            e(f"    buffer_load_dwordx4 {rr(vK(r)+4*i,4)}, v{vKoff}, s[24:27], s{sOff} offen{off} {pol}".rstrip())
    def loadV(r):
        for i in range(4):
            off = f" offset:{1024*i}" if i else ""
            e(f"    buffer_load_dwordx4 {rr(vV(r)+4*i,4)}, v{vVoff}, s[28:31], s{sOff} offen{off} {pol}".rstrip())
    for r in range(R):
        loadK(r); loadV(r)
        e(f"    s_add_u32 s{sOff}, s{sOff}, {stride}")
    e(f"    v_and_b32 v{vA}, 1, v{vLane}")
    e(f"    v_lshlrev_b32 v{vA}, 4, v{vA}                  ; 16*(j'&1)")
    e(f"    v_mov_b32 v{vB}, 0xffff")
    e(f"    v_lshlrev_b32 v{vB}, v{vA}, v{vB}")
    e(f"    v_bfe_u32 v{vA}, v{vLane}, 1, 2                ; j'>>1")
    for k in range(4):
        e(f"    v_cmp_eq_u32 vcc, {k}, v{vA}")
        e(f"    s_nop 1")
        e(f"    v_cndmask_b32 v{vM+k}, 0, v{vB}, vcc")
    import math, struct
    c = (128 ** -0.5) * math.log2(math.e)
    f2u = lambda x: struct.unpack("<I", struct.pack("<f", x))[0]
    e(f"    v_mov_b32 v{vC}, 0x{f2u(c):08x}                ; scale*log2(e)")
    e(f"    s_mov_b32 s{sCnt}, {iters}")
    e(f"    s_or_b32 s36, s{sSplit}, s{sWave}")
    st(2)
    e(f"    s_waitcnt vmcnt({8*R})")
    if stamp:
        e(f"    s_waitcnt vmcnt({8*R-4})")
    st(3)
    e(f"    v_mfma_f32_16x16x32_bf16 {rr(vS+8,4)}, {rr(vS,4)}, {rr(vQ,4)}, 0")
    e(f"    v_lshlrev_b32 v{vA}, 16, v{vS+6}")
    e(f"    v_sub_f32 v{vA}, 1.0, v{vA}")
    e(f"    v_mul_f32 v{vm}, 0x{f2u(-1e9*math.log2(math.e)):08x}, v{vA}   ; (1-mask)*(-1e9)*log2e")
    e(f"    v_lshlrev_b32 v{vO}, 16, v{vS+4}")
    e(f"    v_and_b32 v{vO+1}, 0xffff0000, v{vS+4}")
    e(f"    v_lshlrev_b32 v{vO+2}, 16, v{vS+5}")
    e(f"    v_and_b32 v{vO+3}, 0xffff0000, v{vS+5}")
    e(f"    v_cmp_gt_u32 vcc, 16, v{vLane}")
    e(f"    s_nop 1")
    e(f"    v_cndmask_b32 v{vl}, 0, 1.0, vcc")
    for j in range(4):
        e(f"    v_fmac_f32_dpp v{vm}, v{vS+8+j}, v{vC} quad_perm:[{j},{j},{j},{j}] row_mask:0xf bank_mask:0xf")
        e("    s_nop 1")
    e(f"    s_cmp_eq_u32 s36, 0")
    e(f"    s_cbranch_scc1 L_loop")
    e(f"    v_mov_b32 v{vm}, 0xff7fffff                    ; -FLT_MAX")
    e(f"    v_mov_b32 v{vl}, 0")
    for k in range(4):
        e(f"    v_mov_b32 v{vO+k}, 0")
    e("L_loop:")
    e(f"    s_cmp_eq_u32 s{sCnt}, 1")
    e(f"    s_cselect_b32 s26, 0, s26")
    e(f"    s_cselect_b32 s30, 0, s30")
    N = 8 * R - 4
    for r in range(R):
        e(f"    s_waitcnt vmcnt({N})")
        for i in range(4):
            e(f"    v_mfma_f32_16x16x32_bf16 {rr(vS+4*i,4)}, {rr(vK(r)+4*i,4)}, {rr(vQ,4)}, 0")
        loadK(r)
        e("    s_nop 0")
        for j in range(4):
            for i in range(4):
                op = "v_mul_f32_dpp" if j == 0 else "v_fmac_f32_dpp"
                e(f"    {op} v{vZ+i}, v{vS+4*i+j}, v{vC} quad_perm:[{j},{j},{j},{j}] row_mask:0xf bank_mask:0xf")
        e(f"    v_max3_f32 v{vX}, v{vZ}, v{vZ+1}, v{vm}")
        e(f"    v_max3_f32 v{vX}, v{vZ+2}, v{vZ+3}, v{vX}")
        e(f"    v_mov_b32 v{vY}, v{vX}")
        e("    s_nop 1")
        e(f"    v_permlane32_swap_b32 v{vY}, v{vX}")
        e(f"    v_max_f32 v{vX}, v{vY}, v{vX}")
        e(f"    v_mov_b32 v{vY}, v{vX}")
        e("    s_nop 1")
        e(f"    v_permlane16_swap_b32 v{vY}, v{vX}")
        e(f"    v_max_f32 v{vX}, v{vY}, v{vX}")
        e(f"    v_sub_f32 v{vA}, v{vm}, v{vX}")
        for i in range(4):
            e(f"    v_sub_f32 v{vZ+i}, v{vZ+i}, v{vX}")
        e(f"    v_exp_f32 v{vA}, v{vA}                        ; alpha")
        for i in range(4):
            e(f"    v_exp_f32 v{vZ+i}, v{vZ+i}")
        e(f"    v_mov_b32 v{vB}, v{vA}")
        e(f"    v_mov_b32 v{vm}, v{vX}")
        e(f"    v_fma_f32 v{vl}, v{vl}, v{vA}, v{vZ}")
        e(f"    v_mov_b32_dpp v{vB}, v{vA} row_ror:8 row_mask:0x3 bank_mask:0xc")
        e(f"    v_add_f32 v{vX}, v{vZ+1}, v{vZ+2}")
        e(f"    v_add_f32 v{vl}, v{vl}, v{vZ+3}")
        e(f"    v_mov_b32_dpp v{vB}, v{vA} row_ror:8 row_mask:0xc bank_mask:0x3")
        for i in range(4):
            e(f"    v_cvt_pk_bf16_f32 v{vT0+i}, v{vZ+i}, v{vZ+i}")
        e(f"    v_add_f32 v{vl}, v{vl}, v{vX}")
        for k in range(4):
            e(f"    v_mul_f32 v{vO+k}, v{vO+k}, v{vB}")
        for i in range(4):
            for k in range(4):
                e(f"    v_and_b32 v{vS+4*i+k}, v{vT0+i}, v{vM+k}")
        e(f"    s_waitcnt vmcnt({N})")
        e("    s_nop 0")
        for i in range(4):
            e(f"    v_mfma_f32_16x16x32_bf16 {rr(vO,4)}, {rr(vS+4*i,4)}, {rr(vV(r)+4*i,4)}, {rr(vO,4)}")
        loadV(r)
        e(f"    s_add_u32 s{sOff}, s{sOff}, {stride}")
    e(f"    s_sub_u32 s{sCnt}, s{sCnt}, 1")
    e(f"    s_cmp_lg_u32 s{sCnt}, 0")
    e("    s_cbranch_scc1 L_loop")
    st(4)
    e(f"    v_mov_b32 v{vY}, v{vl}")
    e(f"    v_mov_b32 v{vA}, v{vm}")
    e(f"    s_mul_i32 s34, s{sWave}, 1536")
    e(f"    v_permlane32_swap_b32 v{vY}, v{vl}")
    e(f"    v_add_f32 v{vl}, v{vY}, v{vl}")
    e(f"    v_mov_b32 v{vY}, v{vl}")
    e(f"    v_mov_b32_dpp v{vA}, v{vm} row_ror:8 row_mask:0x3 bank_mask:0xc")
    e(f"    v_add_u32 v{vX}, s34, v{vVoff}")
    e(f"    v_permlane16_swap_b32 v{vY}, v{vl}")
    e(f"    v_mov_b32_dpp v{vA}, v{vm} row_ror:8 row_mask:0xc bank_mask:0x3")
    e(f"    v_add_f32 v{vl}, v{vY}, v{vl}")
    e(f"    v_mov_b32 v{vB}, v{vl}")
    e(f"    v_lshlrev_b32 v{vT}, 3, v{vLane}               ; lane*8")
    e(f"    v_add_u32 v{vY}, s34, v{vT}")
    e(f"    v_mov_b32_dpp v{vB}, v{vl} row_ror:8 row_mask:0x3 bank_mask:0xc")
    e("    s_nop 1")
    e(f"    v_mov_b32_dpp v{vB}, v{vl} row_ror:8 row_mask:0xc bank_mask:0x3")
    e(f"    ds_write_b128 v{vX}, {rr(vO,4)}")
    e(f"    ds_write_b64 v{vY}, {rr(vA,2)} offset:1024")
    e("    s_waitcnt vmcnt(0) lgkmcnt(0)")
    e("    s_barrier")
    st(5)
    e(f"    s_cmp_lg_u32 s{sWave}, 0")
    e("    s_cbranch_scc1 L_fin")
    vOj = lambda j: 48 + 4 * j
    vml = lambda j: 16 + 2 * j
    def merge(n, waitfmt):
        e(f"    {waitfmt}")
        e(f"    v_max_f32 v8, v{vml(0)}, v{vml(1)}")
        for j in range(2, n, 2):
            e(f"    v_max3_f32 v8, v{vml(j)}, v{vml(j+1)}, v8")
        for j in range(n):
            e(f"    v_sub_f32 v{vml(j)}, v{vml(j)}, v8")
        for j in range(n):
            e(f"    v_exp_f32 v{vml(j)}, v{vml(j)}")
        e("    s_nop 0")
        e(f"    v_mul_f32 v9, v{vml(0)}, v{vml(0)+1}")
        for k in range(4):
            e(f"    v_mul_f32 v{4+k}, v{vml(0)}, v{vOj(0)+k}")
        for j in range(1, n):
            e(f"    v_fmac_f32 v9, v{vml(j)}, v{vml(j)+1}")
            for k in range(4):
                e(f"    v_fmac_f32 v{4+k}, v{vml(j)}, v{vOj(j)+k}")
    for j in range(NW):
        e(f"    ds_read_b64 {rr(vml(j),2)}, v{vT} offset:{j*1536+1024}")
        e(f"    ds_read_b128 {rr(vOj(j),4)}, v{vVoff} offset:{j*1536}")
    e(f"    s_mul_i32 s34, s{sHead}, {S*1536}")
    e(f"    s_add_u32 s24, s20, s34")
    e(f"    s_addc_u32 s25, s21, 0")
    e(f"    s_mov_b32 s26, {S*1536}")
    e(f"    s_lshl_b32 s35, s{sSplit}, 10")
    e(f"    s_lshl_b32 s36, s{sSplit}, 9")
    e(f"    s_add_u32 s36, s36, {S*1024}")
    e(f"    s_lshl_b32 s37, s{sHead}, 4")
    merge(NW, "s_waitcnt lgkmcnt(0)")
    e(f"    buffer_store_dwordx4 v[4:7], v{vVoff}, s[24:27], s35 offen sc1")
    e(f"    buffer_store_dwordx2 v[8:9], v{vT}, s[24:27], s36 offen sc1")
    e(f"    v_mov_b32 v10, s37")
    e(f"    v_mov_b32 v11, 1")
    e("    s_mov_b64 exec, 1")
    e("    s_waitcnt vmcnt(0)")
    e(f"    global_atomic_add v12, v10, v11, s[18:19] sc0")
    e("    s_waitcnt vmcnt(0)")
    e(f"    v_readfirstlane_b32 s38, v12")
    e("    s_mov_b64 exec, -1")
    e("    s_nop 1")
    st(6)
    e(f"    s_cmp_lg_u32 s38, {S-1}")
    e("    s_cbranch_scc1 L_fin")
    for b in range(0, S, 4):
        e(f"    s_movk_i32 s{40+b//4}, {b*1024}")
    for b in range(0, S, 8):
        e(f"    s_mov_b32 s{48+b//8}, {S*1024 + b*512}")
    for j in range(S):
        off = (j % 8) * 512
        e(f"    buffer_load_dwordx2 {rr(vml(j),2)}, v{vT}, s[24:27], s{48+j//8} offen offset:{off} sc1")
    for j in range(S):
        off = (j % 4) * 1024
        e(f"    buffer_load_dwordx4 {rr(vOj(j),4)}, v{vVoff}, s[24:27], s{40+j//4} offen offset:{off} sc1")
    e(f"    v_lshrrev_b32 v12, 5, v{vLane}")
    e(f"    v_and_b32 v10, 15, v{vLane}")
    e(f"    v_bfe_u32 v11, v{vLane}, 4, 1")
    e(f"    v_lshlrev_b32 v10, 4, v10")
    e(f"    v_lshl_add_u32 v10, v11, 3, v10")
    e(f"    v_lshl_add_u32 v10, v12, 8, v10")
    e(f"    s_lshl_b32 s34, s{sHead}, 9")
    e(f"    v_add_u32 v10, s34, v10")
    merge(S, "s_waitcnt vmcnt(0)")
    e("    v_rcp_f32 v9, v9")
    e("    s_nop 0")
    for k in range(4):
        e(f"    v_mul_f32 v{4+k}, v{4+k}, v9")
    e("    v_cvt_pk_bf16_f32 v4, v4, v5")
    e("    v_cvt_pk_bf16_f32 v5, v6, v7")
    e("    global_store_dwordx2 v10, v[4:5], s[16:17]")
    if stamp:
        e("    s_waitcnt vmcnt(0)")
    st(7)
    e("L_fin:")
    stflush("x")
    e("L_end:")
    e("    s_endpgm")
    e('.section .rodata,"a"')
    e(".p2align 6")
    e(f".amdhsa_kernel {KNAME}")
    acc = (nvgpr + 3) // 4 * 4
    e(f"  .amdhsa_next_free_vgpr {nvgpr}")
    e(f"  .amdhsa_next_free_sgpr {80 if stamp else 56}")
    e(f"  .amdhsa_accum_offset {acc}")
    e("  .amdhsa_group_segment_fixed_size 0")
    e("  .amdhsa_kernarg_size 72")
    e("  .amdhsa_user_sgpr_count 2")
    e("  .amdhsa_user_sgpr_kernarg_segment_ptr 1")
    e("  .amdhsa_system_sgpr_workgroup_id_x 1")
    e("  .amdhsa_float_denorm_mode_32 3")
    e(".end_amdhsa_kernel")
    return "\n".join(o) + "\n"

if __name__ == "__main__":
    ap = argparse.ArgumentParser()
    ap.add_argument("--nw", type=int, default=8)
    ap.add_argument("--s", type=int, default=16)
    ap.add_argument("--r", type=int, default=2)
    ap.add_argument("--pol", default="nt")
    ap.add_argument("--mode", default="C")
    ap.add_argument("--ldsmin", type=int, default=0)
    ap.add_argument("--splitmajor", action="store_true")
    ap.add_argument("--stamp", action="store_true")
    ap.add_argument("-o", default="-")
    a = ap.parse_args()
    s = gen(a.nw, a.s, a.r, a.pol, a.mode, a.ldsmin, not a.splitmajor, stamp=a.stamp)
    if a.o == "-":
        sys.stdout.write(s)
    else:
        open(a.o, "w").write(s)
```

```python
import sys, argparse, math, struct
sys.path.insert(0, 'gen')
from gen1 import KNAME, HEADER
f2u = lambda x: struct.unpack("<I", struct.pack("<f", x))[0]

def gen(layout="iiwwstsstttst", A=5, pol="nt", tail="atomic", stamp=False, ldsmin=0, splitmajor=False):
    NW, S = 4, 16
    NWG = 256
    bits = lambda c: [k for k, x in enumerate(layout) if x == c]
    bi, bw, bt, bs = bits("i"), bits("w"), bits("t"), bits("s")
    assert bi == [0, 1] and len(bw) == 2 and len(bs) == 4 and len(bt) == 5
    T = 32
    lds = max(NW * 1536, ldsmin)
    o = []; e = o.append
    e(HEADER.rstrip("\n"))
    e(f"; @launch grid=({NWG},1,1) block=({NW*64},1,1) lds={lds}")
    e('.amdgcn_target "amdgcn-amd-amdhsa--gfx950"')
    e(".text"); e(f".globl {KNAME}"); e(".p2align 8"); e(f".type {KNAME},@function"); e(f"{KNAME}:")
    vLane, vKoff, vVoff = 1, 2, 3
    vQ, vM = 4, 8
    vC, vm, vl, vT = 12, 13, 14, 15
    vO, vS, vZ = 16, 20, 36
    vA, vB, vX, vY = 40, 41, 42, 43
    vT0 = 44
    vR = 48
    nvgpr = 112
    rr = lambda a, n: f"v[{a}:{a+n-1}]"
    sHead, sSplit, sWave = 22, 23, 3
    sCur, sNxt, sFix, sTs, sCnt = 32, 33, 35, 37, 39
    def st(k):
        if stamp: e(f"    s_memrealtime s[{60+2*k}:{61+2*k}]")
    if stamp:
        for k in range(60, 84): e(f"    s_mov_b32 s{k}, 0")
    st(0)
    e("    s_load_dwordx16 s[4:19], s[0:1], 0")
    e("    s_load_dwordx2 s[20:21], s[0:1], 64")
    e(f"    s_cmp_ge_u32 s2, {NWG}")
    e("    s_cbranch_scc1 L_end")
    e(f"    v_lshrrev_b32 v{vT}, 6, v0")
    e(f"    v_and_b32 v{vLane}, 63, v0")
    e(f"    v_readfirstlane_b32 s{sWave}, v{vT}")
    if splitmajor:
        e(f"    s_and_b32 s{sHead}, s2, 15"); e(f"    s_lshr_b32 s{sSplit}, s2, 4")
    else:
        e(f"    s_lshr_b32 s{sHead}, s2, 4"); e(f"    s_and_b32 s{sSplit}, s2, 15")
    e(f"    v_lshlrev_b32 v{vVoff}, 4, v{vLane}            ; lane*16")
    e(f"    v_lshrrev_b32 v{vX}, 4, v{vLane}               ; g")
    e(f"    v_and_b32 v{vY}, 3, v{vLane}                   ; j4")
    e(f"    v_lshlrev_b32 v{vX}, 6, v{vX}                  ; g*64")
    e(f"    v_lshl_add_u32 v{vX}, v{vY}, 4, v{vX}          ; g*64 + j4*16")
    e(f"    v_bfe_u32 v{vY}, v{vLane}, 2, 2                ; m")
    e(f"    v_lshl_add_u32 v{vKoff}, v{vY}, 8, v{vX}       ; m*256 + g*64 + j4*16")
    first = True
    for src, bl in ((sWave, bw), (sSplit, bs)):
        j = 0
        while j < len(bl):
            n = 1
            while j + n < len(bl) and bl[j + n] == bl[j] + n: n += 1
            dst = sFix if first else 36
            e(f"    s_bfe_u32 s{dst}, s{src}, {j | (n << 16):#x}")
            e(f"    s_lshl_b32 s{dst}, s{dst}, {bl[j] + 10}")
            if not first: e(f"    s_or_b32 s{sFix}, s{sFix}, s36")
            first = False
            j += n
    tmask = sum(1 << (b + 10) for b in bt)
    e(f"    s_lshl_b32 s34, s{sHead}, 23")
    e(f"    s_lshl_b32 s38, s{sHead}, 8                    ; head * 256")
    e("    s_mov_b32 s26, 0x800000")
    e("    s_mov_b32 s27, 0x20000")
    e("    s_mov_b32 s30, 0x800000")
    e("    s_mov_b32 s31, 0x20000")
    e(f"    v_add_u32 v{vA}, s38, v{vX}")
    e(f"    v_bfe_u32 v{vY}, v{vLane}, 3, 1                ; h (p layout)")
    e(f"    v_lshl_add_u32 v{vB}, v{vY}, 8, v{vA}")
    e(f"    v_add_u32 v{vB}, s38, v{vB}                    ; q offset")
    e(f"    v_and_b32 v{vX}, 15, v{vLane}")
    e(f"    v_bfe_u32 v{vY}, v{vLane}, 4, 1")
    e(f"    v_lshlrev_b32 v{vX}, 4, v{vX}")
    e(f"    v_lshl_add_u32 v{vX}, v{vY}, 3, v{vX}          ; 16c + 8*(G&1)")
    e(f"    v_add_u32 v{vY}, s38, v{vX}")
    e(f"    v_mov_b32 v{vT}, 0")
    e(f"    s_or_b32 s36, s{sSplit}, s{sWave}")
    e("    s_waitcnt lgkmcnt(0)")
    st(1)
    def ld(pos, so):
        srd, vo = ("s[24:27]", vKoff) if pos < 4 else ("s[28:31]", vVoff)
        off = f" offset:{1024*(pos%4)}" if pos % 4 else ""
        e(f"    buffer_load_dwordx4 {rr(vR+4*pos,4)}, v{vo}, {srd}, s{so} offen{off} {pol}".rstrip())
    e(f"    s_cbranch_scc1 L_notree")
    e(f"    global_load_dwordx4 {rr(vS,4)}, v{vA}, s[10:11]")
    e(f"    global_load_dwordx2 {rr(vS+4,2)}, v{vY}, s[12:13]")
    e(f"    global_load_ushort v{vS+6}, v{vT}, s[14:15]")
    e("L_notree:")
    e(f"    s_add_u32 s24, s6, s34")
    e(f"    s_addc_u32 s25, s7, 0")
    e(f"    global_load_dwordx4 {rr(vQ,4)}, v{vB}, s[4:5]")
    for p in range(4): ld(p, sFix)
    e(f"    s_add_u32 s28, s8, s34")
    e(f"    s_addc_u32 s29, s9, 0")
    for p in range(4, A): ld(p, sFix)
    e(f"    s_mov_b32 s{sCur}, s{sFix}")
    e(f"    s_mov_b32 s{sTs}, {1 << (bt[0] + 10):#x}")
    e(f"    s_or_b32 s{sNxt}, s{sTs}, s{sFix}")
    e(f"    v_and_b32 v{vA}, 1, v{vLane}")
    e(f"    v_lshlrev_b32 v{vA}, 4, v{vA}                  ; 16*(j'&1)")
    e(f"    v_mov_b32 v{vB}, 0xffff")
    e(f"    v_lshlrev_b32 v{vB}, v{vA}, v{vB}")
    e(f"    v_bfe_u32 v{vA}, v{vLane}, 1, 2                ; j'>>1")
    for k in range(4):
        e(f"    v_cmp_eq_u32 vcc, {k}, v{vA}")
        e(f"    s_nop 1")
        e(f"    v_cndmask_b32 v{vM+k}, 0, v{vB}, vcc")
    c = (128 ** -0.5) * math.log2(math.e)
    e(f"    v_mov_b32 v{vC}, 0x{f2u(c):08x}                ; scale*log2(e)")
    e(f"    s_mov_b32 s{sCnt}, {T}")
    e(f"    v_mov_b32 v{vm}, 0xff7fffff                    ; -FLT_MAX")
    e(f"    v_mov_b32 v{vl}, 0")
    for k in range(4): e(f"    v_mov_b32 v{vO+k}, 0")
    st(2)
    e(f"    s_cmp_lg_u32 s36, 0")
    e(f"    s_cbranch_scc1 L_skiptree")
    e(f"    s_waitcnt vmcnt({A})")
    e(f"    v_mfma_f32_16x16x32_bf16 {rr(vS+8,4)}, {rr(vS,4)}, {rr(vQ,4)}, 0")
    e(f"    v_lshlrev_b32 v{vA}, 16, v{vS+6}")
    e(f"    v_sub_f32 v{vA}, 1.0, v{vA}")
    e(f"    v_mul_f32 v{vm}, 0x{f2u(-1e9*math.log2(math.e)):08x}, v{vA}   ; (1-mask)*(-1e9)*log2e")
    e(f"    v_lshlrev_b32 v{vO}, 16, v{vS+4}")
    e(f"    v_and_b32 v{vO+1}, 0xffff0000, v{vS+4}")
    e(f"    v_lshlrev_b32 v{vO+2}, 16, v{vS+5}")
    e(f"    v_and_b32 v{vO+3}, 0xffff0000, v{vS+5}")
    e(f"    v_cmp_gt_u32 vcc, 16, v{vLane}")
    e(f"    s_nop 1")
    e(f"    v_cndmask_b32 v{vl}, 0, 1.0, vcc")
    for j in range(4):
        e(f"    v_fmac_f32_dpp v{vm}, v{vS+8+j}, v{vC} quad_perm:[{j},{j},{j},{j}] row_mask:0xf bank_mask:0xf")
        e("    s_nop 1")
    e("L_skiptree:")
    if stamp: e(f"    s_waitcnt vmcnt({A-1})")
    st(3)
    e("L_loop:")
    e(f"    s_cmp_eq_u32 s{sCnt}, 1")
    e(f"    s_cselect_b32 s26, 0, s26")
    def issue(j):
        p = j + A
        if p < 8: ld(p, sCur)
        else: ld(p - 8, sNxt)
    for j in range(4):
        e(f"    s_waitcnt vmcnt({A-1})")
        e(f"    v_mfma_f32_16x16x32_bf16 {rr(vS+4*j,4)}, {rr(vR+4*j,4)}, {rr(vQ,4)}, 0")
        issue(j)
    e(f"    s_cselect_b32 s30, 0, s30")
    e("    s_nop 0")
    def z(i, j):
        op = "v_mul_f32_dpp" if j == 0 else "v_fmac_f32_dpp"
        e(f"    {op} v{vZ+i}, v{vS+4*i+j}, v{vC} quad_perm:[{j},{j},{j},{j}] row_mask:0xf bank_mask:0xf")
    for (i, j) in [(0,0),(1,0),(2,0),(0,1),(1,1),(3,0),(2,1),(0,2),(1,2),(3,1),(2,2),(0,3),(1,3),(3,2),(2,3)]:
        z(i, j)
    e(f"    v_max3_f32 v{vX}, v{vZ}, v{vZ+1}, v{vm}")
    z(3, 3)
    e(f"    v_max3_f32 v{vX}, v{vZ+2}, v{vZ+3}, v{vX}")
    e(f"    v_mov_b32 v{vY}, v{vX}")
    e("    s_nop 1")
    e(f"    v_permlane32_swap_b32 v{vY}, v{vX}")
    e(f"    v_max_f32 v{vX}, v{vY}, v{vX}")
    e(f"    v_mov_b32 v{vY}, v{vX}")
    e("    s_nop 1")
    e(f"    v_permlane16_swap_b32 v{vY}, v{vX}")
    e(f"    v_max_f32 v{vX}, v{vY}, v{vX}")
    e(f"    v_sub_f32 v{vA}, v{vm}, v{vX}")
    for i in range(4): e(f"    v_sub_f32 v{vZ+i}, v{vZ+i}, v{vX}")
    e(f"    v_exp_f32 v{vA}, v{vA}                        ; alpha")
    for i in range(4): e(f"    v_exp_f32 v{vZ+i}, v{vZ+i}")
    e(f"    v_mov_b32 v{vB}, v{vA}")
    e(f"    v_mov_b32 v{vm}, v{vX}")
    e(f"    v_fma_f32 v{vl}, v{vl}, v{vA}, v{vZ}")
    e(f"    v_mov_b32_dpp v{vB}, v{vA} row_ror:8 row_mask:0x3 bank_mask:0xc")
    e(f"    v_add_f32 v{vX}, v{vZ+1}, v{vZ+2}")
    e(f"    v_add_f32 v{vl}, v{vl}, v{vZ+3}")
    e(f"    v_mov_b32_dpp v{vB}, v{vA} row_ror:8 row_mask:0xc bank_mask:0x3")
    for i in range(4): e(f"    v_cvt_pk_bf16_f32 v{vT0+i}, v{vZ+i}, v{vZ+i}")
    e(f"    v_add_f32 v{vl}, v{vl}, v{vX}")
    for k in range(4): e(f"    v_mul_f32 v{vO+k}, v{vO+k}, v{vB}")
    for i in range(4):
        for k in range(4): e(f"    v_and_b32 v{vS+4*i+k}, v{vT0+i}, v{vM+k}")
    for j in range(4, 8):
        e(f"    s_waitcnt vmcnt({A-1})")
        e(f"    v_mfma_f32_16x16x32_bf16 {rr(vO,4)}, {rr(vS+4*(j-4),4)}, {rr(vR+4*j,4)}, {rr(vO,4)}")
        issue(j)
    e(f"    s_mov_b32 s{sCur}, s{sNxt}")
    e(f"    s_or_b32 s{sTs}, s{sTs}, {(~tmask) & 0xffffffff:#x}")
    e(f"    s_add_u32 s{sTs}, s{sTs}, 1")
    e(f"    s_and_b32 s{sTs}, s{sTs}, {tmask:#x}")
    e(f"    s_or_b32 s{sNxt}, s{sTs}, s{sFix}")
    e(f"    s_sub_u32 s{sCnt}, s{sCnt}, 1")
    e(f"    s_cmp_lg_u32 s{sCnt}, 0")
    e("    s_cbranch_scc1 L_loop")
    st(4)
    e(f"    v_mov_b32 v{vY}, v{vl}")
    e(f"    v_mov_b32 v{vA}, v{vm}")
    e(f"    s_mul_i32 s34, s{sWave}, 1536")
    e(f"    v_permlane32_swap_b32 v{vY}, v{vl}")
    e(f"    v_add_f32 v{vl}, v{vY}, v{vl}")
    e(f"    v_mov_b32 v{vY}, v{vl}")
    e(f"    v_mov_b32_dpp v{vA}, v{vm} row_ror:8 row_mask:0x3 bank_mask:0xc")
    e(f"    v_add_u32 v{vX}, s34, v{vVoff}")
    e(f"    v_permlane16_swap_b32 v{vY}, v{vl}")
    e(f"    v_mov_b32_dpp v{vA}, v{vm} row_ror:8 row_mask:0xc bank_mask:0x3")
    e(f"    v_add_f32 v{vl}, v{vY}, v{vl}")
    e(f"    v_mov_b32 v{vB}, v{vl}")
    e(f"    v_lshlrev_b32 v{vT}, 3, v{vLane}               ; lane*8")
    e(f"    v_add_u32 v{vY}, s34, v{vT}")
    e(f"    v_mov_b32_dpp v{vB}, v{vl} row_ror:8 row_mask:0x3 bank_mask:0xc")
    e("    s_nop 1")
    e(f"    v_mov_b32_dpp v{vB}, v{vl} row_ror:8 row_mask:0xc bank_mask:0x3")
    e(f"    ds_write_b128 v{vX}, {rr(vO,4)}")
    e(f"    ds_write_b64 v{vY}, {rr(vA,2)} offset:1024")
    e("    s_waitcnt vmcnt(0) lgkmcnt(0)")
    e("    s_barrier")
    st(5)
    e(f"    s_cmp_lg_u32 s{sWave}, 0")
    e("    s_cbranch_scc1 L_fin")
    vOj = lambda j: 48 + 4 * j
    vml = lambda j: 16 + 2 * j
    def merge(n, waitfmt):
        e(f"    {waitfmt}")
        e(f"    v_max_f32 v8, v{vml(0)}, v{vml(1)}")
        for j in range(2, n, 2): e(f"    v_max3_f32 v8, v{vml(j)}, v{vml(j+1)}, v8")
        for j in range(n): e(f"    v_sub_f32 v{vml(j)}, v{vml(j)}, v8")
        for j in range(n): e(f"    v_exp_f32 v{vml(j)}, v{vml(j)}")
        e("    s_nop 0")
        e(f"    v_mul_f32 v9, v{vml(0)}, v{vml(0)+1}")
        for k in range(4): e(f"    v_mul_f32 v{4+k}, v{vml(0)}, v{vOj(0)+k}")
        for j in range(1, n):
            e(f"    v_fmac_f32 v9, v{vml(j)}, v{vml(j)+1}")
            for k in range(4): e(f"    v_fmac_f32 v{4+k}, v{vml(j)}, v{vOj(j)+k}")
    for j in range(NW):
        e(f"    ds_read_b64 {rr(vml(j),2)}, v{vT} offset:{j*1536+1024}")
        e(f"    ds_read_b128 {rr(vOj(j),4)}, v{vVoff} offset:{j*1536}")
    e(f"    s_mul_i32 s34, s{sHead}, {S*1536}")
    e(f"    s_add_u32 s24, s20, s34")
    e(f"    s_addc_u32 s25, s21, 0")
    e(f"    s_mov_b32 s26, {S*1536}")
    e(f"    s_lshl_b32 s35, s{sSplit}, 10")
    e(f"    s_lshl_b32 s36, s{sSplit}, 9")
    e(f"    s_add_u32 s36, s36, {S*1024}")
    e(f"    s_lshl_b32 s37, s{sHead}, 4")
    merge(NW, "s_waitcnt lgkmcnt(0)")
    st(6)
    e(f"    buffer_store_dwordx4 v[4:7], v{vVoff}, s[24:27], s35 offen sc1")
    e(f"    buffer_store_dwordx2 v[8:9], v{vT}, s[24:27], s36 offen sc1")
    e(f"    v_mov_b32 v10, s37")
    e(f"    v_mov_b32 v11, 1")
    e("    s_mov_b64 exec, 1")
    e("    s_waitcnt vmcnt(0)")
    st(7)
    e(f"    global_atomic_add v12, v10, v11, s[18:19] sc0")
    e("    s_waitcnt vmcnt(0)")
    e(f"    v_readfirstlane_b32 s38, v12")
    e("    s_mov_b64 exec, -1")
    e("    s_nop 1")
    st(8)
    e(f"    s_cmp_lg_u32 s38, {S-1}")
    e("    s_cbranch_scc1 L_fin")
    for b in range(0, S, 4): e(f"    s_movk_i32 s{40+b//4}, {b*1024}")
    for b in range(0, S, 8): e(f"    s_mov_b32 s{48+b//8}, {S*1024 + b*512}")
    for j in range(S):
        e(f"    buffer_load_dwordx2 {rr(vml(j),2)}, v{vT}, s[24:27], s{48+j//8} offen offset:{(j%8)*512} sc1")
    for j in range(S):
        e(f"    buffer_load_dwordx4 {rr(vOj(j),4)}, v{vVoff}, s[24:27], s{40+j//4} offen offset:{(j%4)*1024} sc1")
    e(f"    v_lshrrev_b32 v12, 5, v{vLane}")
    e(f"    v_and_b32 v10, 15, v{vLane}")
    e(f"    v_bfe_u32 v11, v{vLane}, 4, 1")
    e(f"    v_lshlrev_b32 v10, 4, v10")
    e(f"    v_lshl_add_u32 v10, v11, 3, v10")
    e(f"    v_lshl_add_u32 v10, v12, 8, v10")
    e(f"    s_lshl_b32 s34, s{sHead}, 9")
    e(f"    v_add_u32 v10, s34, v10")
    if stamp:
        e("    s_waitcnt vmcnt(0)")
        st(9)
    merge(S, "s_waitcnt vmcnt(0)")
    e("    v_rcp_f32 v9, v9")
    e("    s_nop 0")
    for k in range(4): e(f"    v_mul_f32 v{4+k}, v{4+k}, v9")
    e("    v_cvt_pk_bf16_f32 v4, v4, v5")
    e("    v_cvt_pk_bf16_f32 v5, v6, v7")
    st(10)
    e("    global_store_dwordx2 v10, v[4:5], s[16:17]")
    if stamp: e("    s_waitcnt vmcnt(0)")
    st(11)
    e("L_fin:")
    if stamp:
        e("    s_waitcnt lgkmcnt(0)")
        e(f"    s_mul_i32 s58, s2, {NW}")
        e(f"    s_add_u32 s58, s58, s{sWave}")
        e(f"    s_mul_i32 s58, s58, 96")
        e(f"    s_add_u32 s58, s58, 0x100000")
        e(f"    v_mov_b32 v110, s58")
        for k in range(24): e(f"    v_mov_b32 v{80+k}, s{60+k}")
        e("    s_mov_b64 exec, 1")
        for k in range(6): e(f"    global_store_dwordx4 v110, v[{80+4*k}:{83+4*k}], s[20:21] offset:{16*k}")
    e("L_end:")
    e("    s_endpgm")
    e('.section .rodata,"a"'); e(".p2align 6"); e(f".amdhsa_kernel {KNAME}")
    e(f"  .amdhsa_next_free_vgpr {nvgpr}")
    e(f"  .amdhsa_next_free_sgpr {88 if stamp else 56}")
    e(f"  .amdhsa_accum_offset {nvgpr}")
    e("  .amdhsa_group_segment_fixed_size 0"); e("  .amdhsa_kernarg_size 72"); e("  .amdhsa_user_sgpr_count 2")
    e("  .amdhsa_user_sgpr_kernarg_segment_ptr 1"); e("  .amdhsa_system_sgpr_workgroup_id_x 1")
    e("  .amdhsa_float_denorm_mode_32 3")
    e(".end_amdhsa_kernel")
    return "\n".join(o) + "\n"

if __name__ == "__main__":
    ap = argparse.ArgumentParser()
    ap.add_argument("--lay", default="iiwwstsstttst"); ap.add_argument("--a", type=int, default=5)
    ap.add_argument("--pol", default="nt"); ap.add_argument("--stamp", action="store_true")
    ap.add_argument("--ldsmin", type=int, default=0); ap.add_argument("--splitmajor", action="store_true")
    ap.add_argument("-o", default="-")
    a = ap.parse_args()
    s = gen(a.lay, a.a, a.pol, stamp=a.stamp, ldsmin=a.ldsmin, splitmajor=a.splitmajor)
    (sys.stdout if a.o == "-" else open(a.o, "w")).write(s)
```

```python
import sys, argparse, math, struct
sys.path.insert(0, 'gen')
from gen1 import KNAME, HEADER
f2u = lambda x: struct.unpack("<I", struct.pack("<f", x))[0]
LOG2E = math.log2(math.e)

def gen(layout="iiwwttsttssst", A=5, pol="nt", tail="atomic", stamp=False, ldsmin=0, splitmajor=False, A2=None):
    NW, S, NWG = 4, 16, 256
    A2 = A2 or A
    bits = lambda c: [k for k, x in enumerate(layout) if x == c]
    bi, bw, bt, bs = bits("i"), bits("w"), bits("t"), bits("s")
    assert bi == [0, 1] and len(bw) == 2 and len(bs) == 4 and len(bt) == 5
    lds = max(NW * 4096 + 256, ldsmin)
    o = []; e = o.append
    e(HEADER.rstrip("\n"))
    e(f"; @launch grid=({NWG},1,1) block=({NW*64},1,1) lds={lds}")
    e('.amdgcn_target "amdgcn-amd-amdhsa--gfx950"')
    e(".text"); e(f".globl {KNAME}"); e(".p2align 8"); e(f".type {KNAME},@function"); e(f"{KNAME}:")
    vLane, vKoff, vVoff = 1, 2, 3
    vQ, vM = 4, 8
    vC, vm, vl, vT = 12, 13, 14, 15
    vO, vS = 16, 20
    vZ = 36
    vA, vB, vX, vY = 40, 41, 42, 43
    vP = 44
    vR = 48
    vZA, vZB = 80, 84
    vN, vLa, vZt = 88, 89, 90
    nvgpr = 112
    rr = lambda a, n: f"v[{a}:{a+n-1}]"
    sHead, sSplit, sWave = 22, 23, 3
    sFix, sTs, sCnt = 35, 37, 39
    NST = 12
    def st(k):
        if stamp: e(f"    s_memrealtime s[{60+2*k}:{61+2*k}]")
    if stamp:
        for k in range(60, 60 + 2 * NST): e(f"    s_mov_b32 s{k}, 0")
    st(0)
    e("    s_load_dwordx16 s[4:19], s[0:1], 0")
    e("    s_load_dwordx2 s[20:21], s[0:1], 64")
    e(f"    s_cmp_ge_u32 s2, {NWG}")
    e("    s_cbranch_scc1 L_end")
    e(f"    v_lshrrev_b32 v{vT}, 6, v0")
    e(f"    v_and_b32 v{vLane}, 63, v0")
    e(f"    v_readfirstlane_b32 s{sWave}, v{vT}")
    if splitmajor:
        e(f"    s_and_b32 s{sHead}, s2, 15"); e(f"    s_lshr_b32 s{sSplit}, s2, 4")
    else:
        e(f"    s_lshr_b32 s{sHead}, s2, 4"); e(f"    s_and_b32 s{sSplit}, s2, 15")
    e(f"    v_lshrrev_b32 v{vX}, 4, v{vLane}               ; g")
    e(f"    v_and_b32 v{vY}, 3, v{vLane}                   ; j4")
    e(f"    v_lshlrev_b32 v{vX}, 6, v{vX}                  ; g*64")
    e(f"    v_lshl_add_u32 v{vX}, v{vY}, 4, v{vX}          ; g*64 + j4*16")
    e(f"    v_bfe_u32 v{vY}, v{vLane}, 2, 2                ; m")
    e(f"    v_lshl_add_u32 v{vKoff}, v{vY}, 8, v{vX}       ; m*256 + g*64 + j4*16")
    first = True
    for src, bl in ((sWave, bw), (sSplit, bs)):
        j = 0
        while j < len(bl):
            n = 1
            while j + n < len(bl) and bl[j + n] == bl[j] + n: n += 1
            dst = 44 if first else 36
            e(f"    s_bfe_u32 s{dst}, s{src}, {j | (n << 16):#x}")
            e(f"    s_lshl_b32 s{dst}, s{dst}, {bl[j] + 10}")
            if not first: e(f"    s_or_b32 s44, s44, s36")
            first = False
            j += n
    tmask = sum(1 << (b + 10) for b in bt)
    tsc = lambda t: sum(((t >> j) & 1) << (b + 10) for j, b in enumerate(bt))
    e(f"    s_lshl_b32 s34, s{sHead}, 23")
    e(f"    s_lshl_b32 s38, s{sHead}, 8                    ; head * 256")
    e("    s_mov_b32 s26, 0x800000")
    e("    s_mov_b32 s27, 0x20000")
    e(f"    s_or_b32 s45, s44, {tsc(1):#x}")
    e(f"    v_add_u32 v{vA}, s38, v{vX}")
    e(f"    v_bfe_u32 v{vY}, v{vLane}, 3, 1                ; h (p layout)")
    e(f"    v_lshl_add_u32 v{vB}, v{vY}, 8, v{vA}")
    e(f"    v_add_u32 v{vB}, s38, v{vB}                    ; q offset")
    e(f"    v_and_b32 v{vX}, 15, v{vLane}")
    e(f"    v_bfe_u32 v{vY}, v{vLane}, 4, 1")
    e(f"    v_lshlrev_b32 v{vX}, 4, v{vX}")
    e(f"    v_lshl_add_u32 v{vX}, v{vY}, 3, v{vX}          ; 16c + 8*(G&1)")
    e(f"    v_add_u32 v{vY}, s38, v{vX}")
    e(f"    v_mov_b32 v{vT}, 0")
    e(f"    s_or_b32 s36, s{sSplit}, s{sWave}")
    e("    s_waitcnt lgkmcnt(0)")
    st(1)
    e(f"    s_cbranch_scc1 L_notree")
    e(f"    global_load_dwordx4 {rr(vS,4)}, v{vA}, s[10:11]")
    e(f"    global_load_dwordx2 {rr(vS+4,2)}, v{vY}, s[12:13]")
    e(f"    global_load_ushort v{vS+6}, v{vT}, s[14:15]")
    e("L_notree:")
    e(f"    s_add_u32 s24, s6, s34")
    e(f"    s_addc_u32 s25, s7, 0")
    def ld(pos, srd, vo, nxt):
        so = (46 if nxt else 44) + pos // 4
        off = f" offset:{1024*(pos%4)}" if pos % 4 else ""
        e(f"    buffer_load_dwordx4 {rr(vR+4*pos,4)}, v{vo}, {srd}, s{so} offen{off} {pol}".rstrip())
    e(f"    global_load_dwordx4 {rr(vQ,4)}, v{vB}, s[4:5]")
    for p in range(A): ld(p, "s[24:27]", vKoff, False)
    e(f"    s_add_u32 s28, s8, s34")
    e(f"    s_addc_u32 s29, s9, 0")
    e("    s_mov_b32 s30, 0x800000")
    e("    s_mov_b32 s31, 0x20000")
    e("    s_mov_b64 s[48:49], s[24:25]")
    e("    s_mov_b32 s50, 0x800000")
    e("    s_mov_b32 s51, 0x20000")
    e(f"    s_mov_b32 s{sFix}, s44")
    e(f"    s_or_b32 s46, s44, {tsc(2):#x}")
    e(f"    s_or_b32 s47, s44, {tsc(3):#x}")
    e(f"    s_mov_b32 s{sTs}, {tsc(3):#x}")
    e(f"    v_lshlrev_b32 v{vVoff}, 4, v{vLane}            ; lane*16")
    e(f"    v_mov_b32 v{vN}, v{vKoff}")
    e(f"    s_lshl_b32 s34, s{sWave}, 12")
    e(f"    v_lshrrev_b32 v{vLa}, 3, v{vLane}")
    e(f"    v_lshlrev_b32 v{vLa}, 4, v{vLa}")
    e(f"    v_add_u32 v{vLa}, s34, v{vLa}")
    e(f"    v_and_b32 v{vA}, 1, v{vLane}")
    e(f"    v_lshlrev_b32 v{vA}, 4, v{vA}                  ; 16*(j'&1)")
    e(f"    v_mov_b32 v{vB}, 0xffff")
    e(f"    v_lshlrev_b32 v{vB}, v{vA}, v{vB}")
    e(f"    v_bfe_u32 v{vA}, v{vLane}, 1, 2                ; j'>>1")
    for k in range(4):
        e(f"    v_cmp_eq_u32 vcc, {k}, v{vA}")
        e(f"    s_nop 1")
        e(f"    v_cndmask_b32 v{vM+k}, 0, v{vB}, vcc")
    c = (128 ** -0.5) * LOG2E
    e(f"    v_mov_b32 v{vC}, 0x{f2u(c):08x}                ; scale*log2(e)")
    e(f"    s_mov_b32 s{sCnt}, 16")
    e(f"    s_mov_b32 s52, 0x01010101")
    e(f"    s_mov_b32 s53, 0x01010101")
    e(f"    v_mov_b32 v{vm}, 0xff7fffff                    ; -FLT_MAX")
    for k in range(4): e(f"    v_mov_b32 v{vO+k}, 0")
    st(2)
    e(f"    s_cmp_lg_u32 s36, 0")
    e(f"    s_cbranch_scc1 L_skiptree")
    e(f"    s_waitcnt vmcnt({A})")
    e(f"    v_mfma_f32_16x16x32_bf16 {rr(vS+8,4)}, {rr(vS,4)}, {rr(vQ,4)}, 0")
    e(f"    v_lshlrev_b32 v{vA}, 16, v{vS+6}")
    e(f"    v_sub_f32 v{vA}, 1.0, v{vA}")
    e(f"    v_mul_f32 v{vm}, 0x{f2u(-1e9*LOG2E):08x}, v{vA}   ; (1-mask)*(-1e9)*log2e")
    e(f"    v_lshlrev_b32 v{vO}, 16, v{vS+4}")
    e(f"    v_and_b32 v{vO+1}, 0xffff0000, v{vS+4}")
    e(f"    v_lshlrev_b32 v{vO+2}, 16, v{vS+5}")
    e(f"    v_and_b32 v{vO+3}, 0xffff0000, v{vS+5}")
    e(f"    s_nop 0")
    for j in range(4):
        e(f"    v_fmac_f32_dpp v{vm}, v{vS+8+j}, v{vC} quad_perm:[{j},{j},{j},{j}] row_mask:0xf bank_mask:0xf")
        e("    s_nop 1")
    e("L_skiptree:")
    e(f"    v_mov_b32 v{vZt}, v{vm}")
    if stamp: e(f"    s_waitcnt vmcnt({A-1})")
    st(3)
    def advance():
        e("    s_mov_b64 s[44:45], s[46:47]")
        for d in (46, 47):
            e(f"    s_or_b32 s{sTs}, s{sTs}, {(~tmask) & 0xffffffff:#x}")
            e(f"    s_add_u32 s{sTs}, s{sTs}, 1")
            e(f"    s_and_b32 s{sTs}, s{sTs}, {tmask:#x}")
            e(f"    s_or_b32 s{d}, s{sTs}, s{sFix}")
        e(f"    s_sub_u32 s{sCnt}, s{sCnt}, 1")
        e(f"    s_cmp_lg_u32 s{sCnt}, 0")
    e("L_k:")
    e(f"    s_cmp_lg_u32 s{sCnt}, 1")
    e("    s_cbranch_scc1 L_k1")
    e("    s_mov_b64 s[48:49], s[28:29]")
    e(f"    v_mov_b32 v{vN}, v{vVoff}")
    e("L_k1:")
    def z(i, j):
        op = "v_mul_f32_dpp" if j == 0 else "v_fmac_f32_dpp"
        e(f"    {op} v{vZ+i}, v{vS+4*i+j}, v{vC} quad_perm:[{j},{j},{j},{j}] row_mask:0xf bank_mask:0xf")
    for half in range(2):
        for j in range(4 * half, 4 * half + 4):
            e(f"    s_waitcnt vmcnt({A-1})")
            e(f"    v_mfma_f32_16x16x32_bf16 {rr(vS+4*(j%4),4)}, {rr(vR+4*j,4)}, {rr(vQ,4)}, 0")
            p = j + A
            if p < 8: ld(p, "s[24:27]", vKoff, False)
            else: ld(p - 8, "s[48:51]", vN, True)
        e("    s_nop 1")
        for (i, j) in [(0,0),(1,0),(2,0),(0,1),(1,1),(3,0),(2,1),(0,2),(1,2),(3,1),(2,2),(0,3),(1,3),(3,2),(2,3)]:
            z(i, j)
        e(f"    v_max3_f32 v{vm}, v{vZ}, v{vZ+1}, v{vm}")
        z(3, 3)
        e(f"    v_max3_f32 v{vm}, v{vZ+2}, v{vZ+3}, v{vm}")
        e("    s_mov_b64 exec, s[52:53]")
        e(f"    ds_write_b128 v{vLa}, {rr(vZ,4)}" + (" offset:128" if half else ""))
        e("    s_mov_b64 exec, -1")
    e(f"    v_add_u32 v{vLa}, 0x100, v{vLa}")
    advance()
    e("    s_cbranch_scc1 L_k")
    st(4)
    if A2 > A:
        for p in range(A, A2): ld(p, "s[28:31]", vVoff, False)
    e(f"    v_subrev_u32 v{vLa}, 0x1000, v{vLa}")
    e(f"    v_mov_b32 v{vY}, v{vm}")
    e(f"    ds_read_b128 {rr(vZA,4)}, v{vLa}")
    e(f"    ds_read_b128 {rr(vZB,4)}, v{vLa} offset:128")
    e(f"    v_permlane32_swap_b32 v{vY}, v{vm}")
    e(f"    v_max_f32 v{vm}, v{vY}, v{vm}")
    e(f"    v_mov_b32 v{vY}, v{vm}")
    e(f"    v_cmp_gt_u32 vcc, 16, v{vLane}")
    e(f"    s_mov_b32 s{sCnt}, 16")
    e(f"    v_permlane16_swap_b32 v{vY}, v{vm}")
    e(f"    v_max_f32 v{vm}, v{vY}, v{vm}")
    e(f"    v_sub_f32 v{vA}, v{vZt}, v{vm}")
    e(f"    v_exp_f32 v{vA}, v{vA}")
    e("    s_nop 0")
    e(f"    v_mov_b32 v{vB}, v{vA}")
    e(f"    v_cndmask_b32 v{vl}, 0, v{vA}, vcc")
    e("    s_nop 0")
    e(f"    v_mov_b32_dpp v{vB}, v{vA} row_ror:8 row_mask:0x3 bank_mask:0xc")
    e("    s_nop 1")
    e(f"    v_mov_b32_dpp v{vB}, v{vA} row_ror:8 row_mask:0xc bank_mask:0x3")
    for k in range(4): e(f"    v_mul_f32 v{vO+k}, v{vO+k}, v{vB}")
    e("L_v:")
    e(f"    s_cmp_eq_u32 s{sCnt}, 1")
    e(f"    s_cselect_b32 s50, 0, s50")
    for half in range(2):
        vZr = vZB if half else vZA
        e("    s_waitcnt lgkmcnt(1)")
        for i in range(4): e(f"    v_sub_f32 v{vZ+i}, v{vZr+i}, v{vm}")
        e(f"    ds_read_b128 {rr(vZr,4)}, v{vLa} offset:{256 + 128*half}")
        for i in range(4): e(f"    v_exp_f32 v{vZ+i}, v{vZ+i}")
        e(f"    v_add_f32 v{vl}, v{vl}, v{vZ}")
        for i in range(4): e(f"    v_cvt_pk_bf16_f32 v{vP+i}, v{vZ+i}, v{vZ+i}")
        e(f"    v_add_f32 v{vX}, v{vZ+1}, v{vZ+2}")
        e(f"    v_add_f32 v{vl}, v{vl}, v{vZ+3}")
        for i in range(4):
            for k in range(4): e(f"    v_and_b32 v{vS+4*i+k}, v{vP+i}, v{vM+k}")
        e(f"    v_add_f32 v{vl}, v{vl}, v{vX}")
        for j in range(4 * half, 4 * half + 4):
            e(f"    s_waitcnt vmcnt({A2-1})")
            e(f"    v_mfma_f32_16x16x32_bf16 {rr(vO,4)}, {rr(vS+4*(j%4),4)}, {rr(vR+4*j,4)}, {rr(vO,4)}")
            p = j + A2
            if p < 8: ld(p, "s[28:31]", vVoff, False)
            else: ld(p - 8, "s[48:51]", vVoff, True)
    e(f"    v_add_u32 v{vLa}, 0x100, v{vLa}")
    advance()
    e("    s_cbranch_scc1 L_v")
    st(5)
    e(f"    v_mov_b32 v{vY}, v{vl}")
    e(f"    v_mov_b32 v{vA}, v{vm}")
    e(f"    s_lshl_b32 s34, s{sWave}, 12")
    e(f"    v_permlane32_swap_b32 v{vY}, v{vl}")
    e(f"    v_add_f32 v{vl}, v{vY}, v{vl}")
    e(f"    v_mov_b32 v{vY}, v{vl}")
    e(f"    v_mov_b32_dpp v{vA}, v{vm} row_ror:8 row_mask:0x3 bank_mask:0xc")
    e(f"    v_add_u32 v{vX}, s34, v{vVoff}")
    e(f"    v_permlane16_swap_b32 v{vY}, v{vl}")
    e(f"    v_mov_b32_dpp v{vA}, v{vm} row_ror:8 row_mask:0xc bank_mask:0x3")
    e(f"    v_add_f32 v{vl}, v{vY}, v{vl}")
    e(f"    v_mov_b32 v{vB}, v{vl}")
    e(f"    v_lshlrev_b32 v{vT}, 3, v{vLane}               ; lane*8")
    e(f"    v_add_u32 v{vY}, s34, v{vT}")
    e(f"    v_mov_b32_dpp v{vB}, v{vl} row_ror:8 row_mask:0x3 bank_mask:0xc")
    e("    s_nop 1")
    e(f"    v_mov_b32_dpp v{vB}, v{vl} row_ror:8 row_mask:0xc bank_mask:0x3")
    e(f"    ds_write_b128 v{vX}, {rr(vO,4)}")
    e(f"    ds_write_b64 v{vY}, {rr(vA,2)} offset:1024")
    e("    s_waitcnt vmcnt(0) lgkmcnt(0)")
    e("    s_barrier")
    st(6)
    e(f"    s_cmp_lg_u32 s{sWave}, 0")
    e("    s_cbranch_scc1 L_fin")
    vOj = lambda j: 48 + 4 * j
    vml = lambda j: 16 + 2 * j
    def merge(n, waitfmt):
        e(f"    {waitfmt}")
        e(f"    v_max_f32 v8, v{vml(0)}, v{vml(1)}")
        for j in range(2, n, 2): e(f"    v_max3_f32 v8, v{vml(j)}, v{vml(j+1)}, v8")
        for j in range(n): e(f"    v_sub_f32 v{vml(j)}, v{vml(j)}, v8")
        for j in range(n): e(f"    v_exp_f32 v{vml(j)}, v{vml(j)}")
        e("    s_nop 0")
        e(f"    v_mul_f32 v9, v{vml(0)}, v{vml(0)+1}")
        for k in range(4): e(f"    v_mul_f32 v{4+k}, v{vml(0)}, v{vOj(0)+k}")
        for j in range(1, n):
            e(f"    v_fmac_f32 v9, v{vml(j)}, v{vml(j)+1}")
            for k in range(4): e(f"    v_fmac_f32 v{4+k}, v{vml(j)}, v{vOj(j)+k}")
    for j in range(NW):
        e(f"    ds_read_b64 {rr(vml(j),2)}, v{vT} offset:{j*4096+1024}")
        e(f"    ds_read_b128 {rr(vOj(j),4)}, v{vVoff} offset:{j*4096}")
    e(f"    s_mul_i32 s34, s{sHead}, {S*1536}")
    e(f"    s_add_u32 s24, s20, s34")
    e(f"    s_addc_u32 s25, s21, 0")
    e(f"    s_mov_b32 s26, {S*1536}")
    e(f"    s_lshl_b32 s35, s{sSplit}, 10")
    e(f"    s_lshl_b32 s36, s{sSplit}, 9")
    e(f"    s_add_u32 s36, s36, {S*1024}")
    e(f"    s_lshl_b32 s37, s{sHead}, 4")
    merge(NW, "s_waitcnt lgkmcnt(0)")
    st(7)
    e(f"    buffer_store_dwordx4 v[4:7], v{vVoff}, s[24:27], s35 offen sc1")
    e(f"    buffer_store_dwordx2 v[8:9], v{vT}, s[24:27], s36 offen sc1")
    e(f"    v_mov_b32 v10, s37")
    e(f"    v_mov_b32 v11, 1")
    e("    s_mov_b64 exec, 1")
    e("    s_waitcnt vmcnt(0)")
    e(f"    global_atomic_add v12, v10, v11, s[18:19] sc0")
    e("    s_waitcnt vmcnt(0)")
    e(f"    v_readfirstlane_b32 s38, v12")
    e("    s_mov_b64 exec, -1")
    e("    s_nop 1")
    st(8)
    e(f"    s_cmp_lg_u32 s38, {S-1}")
    e("    s_cbranch_scc1 L_fin")
    for b in range(0, S, 4): e(f"    s_movk_i32 s{40+b//4}, {b*1024}")
    for b in range(0, S, 8): e(f"    s_mov_b32 s{48+b//8}, {S*1024 + b*512}")
    for j in range(S):
        e(f"    buffer_load_dwordx2 {rr(vml(j),2)}, v{vT}, s[24:27], s{48+j//8} offen offset:{(j%8)*512} sc1")
    for j in range(S):
        e(f"    buffer_load_dwordx4 {rr(vOj(j),4)}, v{vVoff}, s[24:27], s{40+j//4} offen offset:{(j%4)*1024} sc1")
    e(f"    v_lshrrev_b32 v12, 5, v{vLane}")
    e(f"    v_and_b32 v10, 15, v{vLane}")
    e(f"    v_bfe_u32 v11, v{vLane}, 4, 1")
    e(f"    v_lshlrev_b32 v10, 4, v10")
    e(f"    v_lshl_add_u32 v10, v11, 3, v10")
    e(f"    v_lshl_add_u32 v10, v12, 8, v10")
    e(f"    s_lshl_b32 s34, s{sHead}, 9")
    e(f"    v_add_u32 v10, s34, v10")
    if stamp:
        e("    s_waitcnt vmcnt(0)")
        st(9)
    merge(S, "s_waitcnt vmcnt(0)")
    e("    v_rcp_f32 v9, v9")
    e("    s_nop 0")
    for k in range(4): e(f"    v_mul_f32 v{4+k}, v{4+k}, v9")
    e("    v_cvt_pk_bf16_f32 v4, v4, v5")
    e("    v_cvt_pk_bf16_f32 v5, v6, v7")
    st(10)
    e("    global_store_dwordx2 v10, v[4:5], s[16:17]")
    if stamp: e("    s_waitcnt vmcnt(0)")
    st(11)
    e("L_fin:")
    if stamp:
        e("    s_waitcnt lgkmcnt(0)")
        e(f"    s_mul_i32 s58, s2, {NW}")
        e(f"    s_add_u32 s58, s58, s{sWave}")
        e(f"    s_mul_i32 s58, s58, {8*NST}")
        e(f"    s_add_u32 s58, s58, 0x100000")
        e(f"    v_mov_b32 v110, s58")
        for k in range(2 * NST): e(f"    v_mov_b32 v{80+k}, s{60+k}")
        e("    s_mov_b64 exec, 1")
        for k in range(NST // 2): e(f"    global_store_dwordx4 v110, v[{80+4*k}:{83+4*k}], s[20:21] offset:{16*k}")
    e("L_end:")
    e("    s_endpgm")
    e('.section .rodata,"a"'); e(".p2align 6"); e(f".amdhsa_kernel {KNAME}")
    e(f"  .amdhsa_next_free_vgpr {nvgpr}")
    e(f"  .amdhsa_next_free_sgpr {88 if stamp else 56}")
    e(f"  .amdhsa_accum_offset {nvgpr}")
    e("  .amdhsa_group_segment_fixed_size 0"); e("  .amdhsa_kernarg_size 72"); e("  .amdhsa_user_sgpr_count 2")
    e("  .amdhsa_user_sgpr_kernarg_segment_ptr 1"); e("  .amdhsa_system_sgpr_workgroup_id_x 1")
    e("  .amdhsa_float_denorm_mode_32 3")
    e(".end_amdhsa_kernel")
    return "\n".join(o) + "\n"

if __name__ == "__main__":
    ap = argparse.ArgumentParser()
    ap.add_argument("--lay", default="iiwwttsttssst"); ap.add_argument("--a", type=int, default=5); ap.add_argument("--a2", type=int, default=0)
    ap.add_argument("--pol", default="nt"); ap.add_argument("--stamp", action="store_true")
    ap.add_argument("--ldsmin", type=int, default=0); ap.add_argument("--splitmajor", action="store_true")
    ap.add_argument("-o", default="-")
    a = ap.parse_args()
    s = gen(a.lay, a.a, a.pol, stamp=a.stamp, ldsmin=a.ldsmin, splitmajor=a.splitmajor, A2=a.a2)
    (sys.stdout if a.o == "-" else open(a.o, "w")).write(s)
```

```python
import sys, argparse, math, struct
sys.path.insert(0, 'gen')
from gen1 import KNAME, HEADER
f2u = lambda x: struct.unpack("<I", struct.pack("<f", x))[0]
LOG2E = math.log2(math.e)

def gen(layout="iiwwttsttssst", A=5, pol="nt", tail="atomic", stamp=False, ldsmin=0, splitmajor=False, A2=None, xcc=True):
    NW, S, NWG = 4, 16, 256
    A2 = A2 or A
    bits = lambda c: [k for k, x in enumerate(layout) if x == c]
    bi, bw, bt, bs = bits("i"), bits("w"), bits("t"), bits("s")
    assert bi == [0, 1] and len(bw) == 2 and len(bs) == 4 and len(bt) == 5
    lds = max(NW * 4096 + 256, ldsmin)
    o = []; e = o.append
    e(HEADER.rstrip("\n"))
    e(f"; @launch grid=({NWG},1,1) block=({NW*64},1,1) lds={lds}")
    e('.amdgcn_target "amdgcn-amd-amdhsa--gfx950"')
    e(".text"); e(f".globl {KNAME}"); e(".p2align 8"); e(f".type {KNAME},@function"); e(f"{KNAME}:")
    vLane, vKoff, vVoff = 1, 2, 3
    vQ, vM = 4, 8
    vC, vm, vl, vT = 12, 13, 14, 15
    vO, vS = 16, 20
    vZ = 36
    vA, vB, vX, vY = 40, 41, 42, 43
    vP = 44
    vR = 48
    vZA, vZB = 80, 84
    vN, vLa, vZt, vTag, vD = 88, 89, 90, 91, 92
    nvgpr = 112
    rr = lambda a, n: f"v[{a}:{a+n-1}]"
    sHead, sSplit, sWave = 22, 23, 3
    sFix, sTs, sCnt = 35, 37, 39
    NST = 12
    def st(k):
        if stamp: e(f"    s_memrealtime s[{60+2*k}:{61+2*k}]")
    if stamp:
        for k in range(60, 60 + 2 * NST): e(f"    s_mov_b32 s{k}, 0")
    st(0)
    e("    s_load_dwordx16 s[4:19], s[0:1], 0")
    e("    s_load_dwordx2 s[20:21], s[0:1], 64")
    e(f"    s_cmp_ge_u32 s2, {NWG}")
    e("    s_cbranch_scc1 L_end")
    e(f"    v_lshrrev_b32 v{vT}, 6, v0")
    e(f"    v_and_b32 v{vLane}, 63, v0")
    e(f"    v_readfirstlane_b32 s{sWave}, v{vT}")
    if splitmajor:
        e(f"    s_and_b32 s{sHead}, s2, 15"); e(f"    s_lshr_b32 s{sSplit}, s2, 4")
    else:
        e(f"    s_lshr_b32 s{sHead}, s2, 4"); e(f"    s_and_b32 s{sSplit}, s2, 15")
    e(f"    v_lshrrev_b32 v{vX}, 4, v{vLane}               ; g")
    e(f"    v_and_b32 v{vY}, 3, v{vLane}                   ; j4")
    e(f"    v_lshlrev_b32 v{vX}, 6, v{vX}                  ; g*64")
    e(f"    v_lshl_add_u32 v{vX}, v{vY}, 4, v{vX}          ; g*64 + j4*16")
    e(f"    v_bfe_u32 v{vY}, v{vLane}, 2, 2                ; m")
    e(f"    v_lshl_add_u32 v{vKoff}, v{vY}, 8, v{vX}       ; m*256 + g*64 + j4*16")
    first = True
    for src, bl in ((sWave, bw), (sSplit, bs)):
        j = 0
        while j < len(bl):
            n = 1
            while j + n < len(bl) and bl[j + n] == bl[j] + n: n += 1
            dst = 44 if first else 36
            e(f"    s_bfe_u32 s{dst}, s{src}, {j | (n << 16):#x}")
            e(f"    s_lshl_b32 s{dst}, s{dst}, {bl[j] + 10}")
            if not first: e(f"    s_or_b32 s44, s44, s36")
            first = False
            j += n
    tmask = sum(1 << (b + 10) for b in bt)
    tsc = lambda t: sum(((t >> j) & 1) << (b + 10) for j, b in enumerate(bt))
    e(f"    s_lshl_b32 s34, s{sHead}, 23")
    e(f"    s_lshl_b32 s38, s{sHead}, 8                    ; head * 256")
    e("    s_mov_b32 s26, 0x800000")
    e("    s_mov_b32 s27, 0x20000")
    e(f"    s_or_b32 s45, s44, {tsc(1):#x}")
    e(f"    v_add_u32 v{vA}, s38, v{vX}")
    e(f"    v_bfe_u32 v{vY}, v{vLane}, 3, 1                ; h (p layout)")
    e(f"    v_lshl_add_u32 v{vB}, v{vY}, 8, v{vA}")
    e(f"    v_add_u32 v{vB}, s38, v{vB}                    ; q offset")
    e(f"    v_and_b32 v{vX}, 15, v{vLane}")
    e(f"    v_bfe_u32 v{vY}, v{vLane}, 4, 1")
    e(f"    v_lshlrev_b32 v{vX}, 4, v{vX}")
    e(f"    v_lshl_add_u32 v{vX}, v{vY}, 3, v{vX}          ; 16c + 8*(G&1)")
    e(f"    v_add_u32 v{vY}, s38, v{vX}")
    e(f"    v_mov_b32 v{vT}, 0")
    if tail == "poll":
        e(f"    s_xor_b32 s36, s{sSplit}, 8")
        e(f"    s_or_b32 s36, s36, s{sWave}")
    else:
        e(f"    s_or_b32 s36, s{sSplit}, s{sWave}")
    e("    s_waitcnt lgkmcnt(0)")
    st(1)
    e(f"    s_cbranch_scc1 L_notree")
    e(f"    global_load_dwordx4 {rr(vS,4)}, v{vA}, s[10:11]")
    e(f"    global_load_dwordx2 {rr(vS+4,2)}, v{vY}, s[12:13]")
    e(f"    global_load_ushort v{vS+6}, v{vT}, s[14:15]")
    e("L_notree:")
    e(f"    s_add_u32 s24, s6, s34")
    e(f"    s_addc_u32 s25, s7, 0")
    def ld(pos, srd, vo, nxt):
        so = (46 if nxt else 44) + pos // 4
        off = f" offset:{1024*(pos%4)}" if pos % 4 else ""
        e(f"    buffer_load_dwordx4 {rr(vR+4*pos,4)}, v{vo}, {srd}, s{so} offen{off} {pol}".rstrip())
    e(f"    global_load_dwordx4 {rr(vQ,4)}, v{vB}, s[4:5]")
    for p in range(A): ld(p, "s[24:27]", vKoff, False)
    e(f"    s_add_u32 s28, s8, s34")
    e(f"    s_addc_u32 s29, s9, 0")
    e("    s_mov_b32 s30, 0x800000")
    e("    s_mov_b32 s31, 0x20000")
    e("    s_mov_b64 s[48:49], s[24:25]")
    e("    s_mov_b32 s50, 0x800000")
    e("    s_mov_b32 s51, 0x20000")
    e(f"    s_mov_b32 s{sFix}, s44")
    e(f"    s_or_b32 s46, s44, {tsc(2):#x}")
    e(f"    s_or_b32 s47, s44, {tsc(3):#x}")
    e(f"    s_mov_b32 s{sTs}, {tsc(3):#x}")
    e(f"    v_lshlrev_b32 v{vVoff}, 4, v{vLane}            ; lane*16")
    e(f"    v_mov_b32 v{vN}, v{vKoff}")
    e(f"    s_lshl_b32 s34, s{sWave}, 12")
    e(f"    v_lshrrev_b32 v{vLa}, 3, v{vLane}")
    e(f"    v_lshlrev_b32 v{vLa}, 4, v{vLa}")
    e(f"    v_add_u32 v{vLa}, s34, v{vLa}")
    e(f"    v_and_b32 v{vA}, 1, v{vLane}")
    e(f"    v_lshlrev_b32 v{vA}, 4, v{vA}                  ; 16*(j'&1)")
    e(f"    v_mov_b32 v{vB}, 0xffff")
    e(f"    v_lshlrev_b32 v{vB}, v{vA}, v{vB}")
    e(f"    v_bfe_u32 v{vA}, v{vLane}, 1, 2                ; j'>>1")
    for k in range(4):
        e(f"    v_cmp_eq_u32 vcc, {k}, v{vA}")
        e(f"    s_nop 1")
        e(f"    v_cndmask_b32 v{vM+k}, 0, v{vB}, vcc")
    c = (128 ** -0.5) * LOG2E
    e(f"    v_mov_b32 v{vC}, 0x{f2u(c):08x}                ; scale*log2(e)")
    e(f"    s_mov_b32 s{sCnt}, 16")
    e(f"    s_mov_b32 s52, 0x01010101")
    e(f"    s_mov_b32 s53, 0x01010101")
    e(f"    v_mov_b32 v{vm}, 0xff7fffff                    ; -FLT_MAX")
    for k in range(4): e(f"    v_mov_b32 v{vO+k}, 0")
    if tail == "poll":
        e(f"    s_lshl_b32 s34, s{sHead}, 15")
        e(f"    s_add_u32 s40, s20, s34")
        e(f"    s_addc_u32 s41, s21, 0")
        e(f"    s_mov_b32 s42, 0x8000")
        e(f"    s_mov_b32 s43, 0x20000")
        e(f"    s_lshl_b32 s34, s{sHead}, 2")
        e(f"    v_mov_b32 v{vD}, s34")
        e(f"    s_getreg_b32 s58, hwreg(HW_REG_XCC_ID, 0, 4)")
        e(f"    s_lshl_b32 s34, s{sSplit}, 2")
        e(f"    s_add_u32 s34, s34, s{sWave}")
        e(f"    s_cmp_lg_u32 s34, 1")
        e(f"    s_cbranch_scc1 L_notag")
        e(f"    s_memrealtime s[54:55]")
        e(f"    s_waitcnt lgkmcnt(0)")
        e(f"    s_lshl_b32 s54, s54, 4")
        e(f"    s_or_b32 s54, s54, s58")
        e(f"    s_bitset1_b32 s54, 31")
        e(f"    v_mov_b32 v{vA}, s54")
        e(f"    s_mov_b64 exec, 1")
        e(f"    global_store_dword v{vD}, v{vA}, s[18:19] sc1")
        e(f"    s_mov_b64 exec, -1")
        e("L_notag:")
    st(2)
    e(f"    s_cmp_lg_u32 s36, 0")
    e(f"    s_cbranch_scc1 L_skiptree")
    e(f"    s_waitcnt vmcnt({A})")
    e(f"    v_mfma_f32_16x16x32_bf16 {rr(vS+8,4)}, {rr(vS,4)}, {rr(vQ,4)}, 0")
    e(f"    v_lshlrev_b32 v{vA}, 16, v{vS+6}")
    e(f"    v_sub_f32 v{vA}, 1.0, v{vA}")
    e(f"    v_mul_f32 v{vm}, 0x{f2u(-1e9*LOG2E):08x}, v{vA}   ; (1-mask)*(-1e9)*log2e")
    e(f"    v_lshlrev_b32 v{vO}, 16, v{vS+4}")
    e(f"    v_and_b32 v{vO+1}, 0xffff0000, v{vS+4}")
    e(f"    v_lshlrev_b32 v{vO+2}, 16, v{vS+5}")
    e(f"    v_and_b32 v{vO+3}, 0xffff0000, v{vS+5}")
    e(f"    s_nop 0")
    for j in range(4):
        e(f"    v_fmac_f32_dpp v{vm}, v{vS+8+j}, v{vC} quad_perm:[{j},{j},{j},{j}] row_mask:0xf bank_mask:0xf")
        e("    s_nop 1")
    e("L_skiptree:")
    e(f"    v_mov_b32 v{vZt}, v{vm}")
    if stamp: e(f"    s_waitcnt vmcnt({A-1})")
    st(3)
    def advance():
        e("    s_mov_b64 s[44:45], s[46:47]")
        for d in (46, 47):
            e(f"    s_or_b32 s{sTs}, s{sTs}, {(~tmask) & 0xffffffff:#x}")
            e(f"    s_add_u32 s{sTs}, s{sTs}, 1")
            e(f"    s_and_b32 s{sTs}, s{sTs}, {tmask:#x}")
            e(f"    s_or_b32 s{d}, s{sTs}, s{sFix}")
        e(f"    s_sub_u32 s{sCnt}, s{sCnt}, 1")
        e(f"    s_cmp_lg_u32 s{sCnt}, 0")
    e("L_k:")
    e(f"    s_cmp_lg_u32 s{sCnt}, 1")
    e("    s_cbranch_scc1 L_k1")
    e("    s_mov_b64 s[48:49], s[28:29]")
    e(f"    v_mov_b32 v{vN}, v{vVoff}")
    e("L_k1:")
    def z(i, j):
        op = "v_mul_f32_dpp" if j == 0 else "v_fmac_f32_dpp"
        e(f"    {op} v{vZ+i}, v{vS+4*i+j}, v{vC} quad_perm:[{j},{j},{j},{j}] row_mask:0xf bank_mask:0xf")
    for half in range(2):
        for j in range(4 * half, 4 * half + 4):
            e(f"    s_waitcnt vmcnt({A-1})")
            e(f"    v_mfma_f32_16x16x32_bf16 {rr(vS+4*(j%4),4)}, {rr(vR+4*j,4)}, {rr(vQ,4)}, 0")
            p = j + A
            if p < 8: ld(p, "s[24:27]", vKoff, False)
            else: ld(p - 8, "s[48:51]", vN, True)
        e("    s_nop 1")
        for (i, j) in [(0,0),(1,0),(2,0),(0,1),(1,1),(3,0),(2,1),(0,2),(1,2),(3,1),(2,2),(0,3),(1,3),(3,2),(2,3)]:
            z(i, j)
        e(f"    v_max3_f32 v{vm}, v{vZ}, v{vZ+1}, v{vm}")
        z(3, 3)
        e(f"    v_max3_f32 v{vm}, v{vZ+2}, v{vZ+3}, v{vm}")
        e("    s_mov_b64 exec, s[52:53]")
        e(f"    ds_write_b128 v{vLa}, {rr(vZ,4)}" + (" offset:128" if half else ""))
        e("    s_mov_b64 exec, -1")
    e(f"    v_add_u32 v{vLa}, 0x100, v{vLa}")
    advance()
    e("    s_cbranch_scc1 L_k")
    st(4)
    if A2 > A:
        for p in range(A, A2): ld(p, "s[28:31]", vVoff, False)
    if tail == "poll":
        e(f"    global_load_dword v{vTag}, v{vD}, s[18:19] sc1")
        e(f"    s_lshl_b32 s54, s{sSplit}, 11")
        e(f"    s_cmp_lg_u32 s{sWave}, 0")
        e(f"    s_cbranch_scc1 L_noclear")
        for k in range(4): e(f"    v_mov_b32 v{vS+k}, 0")
        e(f"    buffer_store_dwordx4 {rr(vS,4)}, v{vVoff}, s[40:43], s54 offen sc1")
        e(f"    buffer_store_dwordx4 {rr(vS,4)}, v{vVoff}, s[40:43], s54 offen offset:1024 sc1")
        e("L_noclear:")
    e(f"    v_subrev_u32 v{vLa}, 0x1000, v{vLa}")
    e(f"    v_mov_b32 v{vY}, v{vm}")
    e(f"    ds_read_b128 {rr(vZA,4)}, v{vLa}")
    e(f"    ds_read_b128 {rr(vZB,4)}, v{vLa} offset:128")
    e(f"    v_permlane32_swap_b32 v{vY}, v{vm}")
    e(f"    v_max_f32 v{vm}, v{vY}, v{vm}")
    e(f"    v_mov_b32 v{vY}, v{vm}")
    e(f"    v_cmp_gt_u32 vcc, 16, v{vLane}")
    e(f"    s_mov_b32 s{sCnt}, 16")
    e(f"    v_permlane16_swap_b32 v{vY}, v{vm}")
    e(f"    v_max_f32 v{vm}, v{vY}, v{vm}")
    e(f"    v_sub_f32 v{vA}, v{vZt}, v{vm}")
    e(f"    v_exp_f32 v{vA}, v{vA}")
    e("    s_nop 0")
    e(f"    v_mov_b32 v{vB}, v{vA}")
    e(f"    v_cndmask_b32 v{vl}, 0, v{vA}, vcc")
    e("    s_nop 0")
    e(f"    v_mov_b32_dpp v{vB}, v{vA} row_ror:8 row_mask:0x3 bank_mask:0xc")
    e("    s_nop 1")
    e(f"    v_mov_b32_dpp v{vB}, v{vA} row_ror:8 row_mask:0xc bank_mask:0x3")
    for k in range(4): e(f"    v_mul_f32 v{vO+k}, v{vO+k}, v{vB}")
    e("L_v:")
    e(f"    s_cmp_eq_u32 s{sCnt}, 1")
    e(f"    s_cselect_b32 s50, 0, s50")
    for half in range(2):
        vZr = vZB if half else vZA
        e("    s_waitcnt lgkmcnt(1)")
        for i in range(4): e(f"    v_sub_f32 v{vZ+i}, v{vZr+i}, v{vm}")
        e(f"    ds_read_b128 {rr(vZr,4)}, v{vLa} offset:{256 + 128*half}")
        for i in range(4): e(f"    v_exp_f32 v{vZ+i}, v{vZ+i}")
        e(f"    v_add_f32 v{vl}, v{vl}, v{vZ}")
        for i in range(4): e(f"    v_cvt_pk_bf16_f32 v{vP+i}, v{vZ+i}, v{vZ+i}")
        e(f"    v_add_f32 v{vX}, v{vZ+1}, v{vZ+2}")
        e(f"    v_add_f32 v{vl}, v{vl}, v{vZ+3}")
        for i in range(4):
            for k in range(4): e(f"    v_and_b32 v{vS+4*i+k}, v{vP+i}, v{vM+k}")
        e(f"    v_add_f32 v{vl}, v{vl}, v{vX}")
        for j in range(4 * half, 4 * half + 4):
            e(f"    s_waitcnt vmcnt({A2-1})")
            e(f"    v_mfma_f32_16x16x32_bf16 {rr(vO,4)}, {rr(vS+4*(j%4),4)}, {rr(vR+4*j,4)}, {rr(vO,4)}")
            p = j + A2
            if p < 8: ld(p, "s[28:31]", vVoff, False)
            else: ld(p - 8, "s[48:51]", vVoff, True)
    e(f"    v_add_u32 v{vLa}, 0x100, v{vLa}")
    advance()
    e("    s_cbranch_scc1 L_v")
    st(5)
    e(f"    v_mov_b32 v{vY}, v{vl}")
    e(f"    v_mov_b32 v{vA}, v{vm}")
    e(f"    s_lshl_b32 s34, s{sWave}, 12")
    e(f"    v_permlane32_swap_b32 v{vY}, v{vl}")
    e(f"    v_add_f32 v{vl}, v{vY}, v{vl}")
    e(f"    v_mov_b32 v{vY}, v{vl}")
    e(f"    v_mov_b32_dpp v{vA}, v{vm} row_ror:8 row_mask:0x3 bank_mask:0xc")
    e(f"    v_add_u32 v{vX}, s34, v{vVoff}")
    e(f"    v_permlane16_swap_b32 v{vY}, v{vl}")
    e(f"    v_mov_b32_dpp v{vA}, v{vm} row_ror:8 row_mask:0xc bank_mask:0x3")
    e(f"    v_add_f32 v{vl}, v{vY}, v{vl}")
    e(f"    v_mov_b32 v{vB}, v{vl}")
    e(f"    v_lshlrev_b32 v{vT}, 3, v{vLane}               ; lane*8")
    e(f"    v_add_u32 v{vY}, s34, v{vT}")
    e(f"    v_mov_b32_dpp v{vB}, v{vl} row_ror:8 row_mask:0x3 bank_mask:0xc")
    e("    s_nop 1")
    e(f"    v_mov_b32_dpp v{vB}, v{vl} row_ror:8 row_mask:0xc bank_mask:0x3")
    if tail == "poll":
        SO = [4, 5, 6, 8]; SM, SL = 9, 10
        vml = lambda j: 20 + 2 * j
        vOj = lambda j: 48 + 4 * j
        vRa, vRb = 12, 13
        e(f"    ds_write_b128 v{vX}, {rr(vO,4)}")
        e(f"    ds_write_b64 v{vY}, {rr(vA,2)} offset:1024")
        e(f"    v_mov_b32 v{vRa}, v{vVoff}")
        e(f"    v_mov_b32 v{vRb}, v{vT}")
        e(f"    s_mov_b32 s55, 0                               ; stage")
        e(f"    s_mov_b32 s59, 0x40000")
        e("    s_waitcnt vmcnt(0)")
        e(f"    v_readfirstlane_b32 s56, v{vTag}")
        e(f"    s_nop 0")
        e(f"    s_cmp_lg_u32 s56, 0")
        e(f"    s_cbranch_scc1 L_havetag")
        e("L_waittag:")
        e(f"    global_load_dword v{vTag}, v{vD}, s[18:19] sc1")
        e("    s_waitcnt vmcnt(0)")
        e(f"    v_readfirstlane_b32 s56, v{vTag}")
        e(f"    s_sub_u32 s59, s59, 1")
        e(f"    s_cbranch_scc1 L_havetag")
        e(f"    s_cmp_eq_u32 s56, 0")
        e(f"    s_cbranch_scc1 L_waittag")
        e("L_havetag:")
        e(f"    v_mov_b32 v7, s56")
        e(f"    v_mov_b32 v11, s56")
        e("L_sync:")
        e("    s_waitcnt lgkmcnt(0)")
        e("    s_barrier")
        st(6)
        e(f"    s_cmp_eq_u32 s{sWave}, 0")
        e("    s_cbranch_scc1 L_merge4")
        e(f"    s_or_b32 s34, s55, s{sSplit}")
        e("    s_cbranch_scc1 L_fin")
        e(f"    v_mov_b32 v{SM}, 0xff7fffff")
        e(f"    v_mov_b32 v{SL}, 0")
        for k in SO: e(f"    v_mov_b32 v{k}, 0")
        e(f"    s_mov_b32 s57, 15")
        e("    s_branch L_poll0")
        e("L_merge4:")
        for j in range(NW):
            e(f"    ds_read_b64 {rr(vml(j),2)}, v{vRb} offset:{j*4096+1024}")
            e(f"    ds_read_b128 {rr(vOj(j),4)}, v{vRa} offset:{j*4096}")
        e("    s_waitcnt lgkmcnt(1)")
        e(f"    v_max_f32 v{SM}, v{vml(0)}, v{vml(1)}")
        e(f"    v_max3_f32 v{SM}, v{vml(2)}, v{vml(3)}, v{SM}")
        for j in range(4): e(f"    v_sub_f32 v{vml(j)}, v{vml(j)}, v{SM}")
        for j in range(4): e(f"    v_exp_f32 v{vml(j)}, v{vml(j)}")
        e("    s_waitcnt lgkmcnt(0)")
        e(f"    v_mul_f32 v{SL}, v{vml(0)}, v{vml(0)+1}")
        for k in range(4): e(f"    v_mul_f32 v{SO[k]}, v{vml(0)}, v{vOj(0)+k}")
        for j in range(1, 4):
            e(f"    v_fmac_f32 v{SL}, v{vml(j)}, v{vml(j)+1}")
            for k in range(4): e(f"    v_fmac_f32 v{SO[k]}, v{vml(j)}, v{vOj(j)+k}")
        e(f"    s_cmp_lg_u32 s55, 0")
        e("    s_cbranch_scc1 L_out")
        st(7)
        e(f"    s_cmp_eq_u32 s{sSplit}, 0")
        e("    s_cbranch_scc1 L_comb")
        if xcc:
            e(f"    s_and_b32 s34, s56, 15")
            e(f"    s_cmp_lg_u32 s34, s58")
            e("    s_cbranch_scc1 L_far")
            e(f"    buffer_store_dwordx4 v[4:7], v{vVoff}, s[40:43], s54 offen")
            e(f"    buffer_store_dwordx4 v[8:11], v{vVoff}, s[40:43], s54 offen offset:1024")
            e("    s_branch L_fin")
            e("L_far:")
        e(f"    buffer_store_dwordx4 v[4:7], v{vVoff}, s[40:43], s54 offen sc1")
        e(f"    buffer_store_dwordx4 v[8:11], v{vVoff}, s[40:43], s54 offen offset:1024 sc1")
        e("    s_branch L_fin")
        e("L_comb:")
        e(f"    s_mov_b32 s57, 14")
        e("L_poll0:")
        e(f"    s_lshl_b32 s44, s{sWave}, 13")
        e(f"    s_add_u32 s45, s44, 4096")
        e("L_poll:")
        vG = lambda k: 48 + 8 * k
        for k in range(4):
            e(f"    s_bitcmp1_b32 s57, {k}")
            e(f"    s_cbranch_scc0 L_pi{k}")
            e(f"    buffer_load_dwordx4 {rr(vG(k),4)}, v{vVoff}, s[40:43], s{44+k//2} offen offset:{(k%2)*2048} sc1")
            e(f"    buffer_load_dwordx4 {rr(vG(k)+4,4)}, v{vVoff}, s[40:43], s{44+k//2} offen offset:{(k%2)*2048+1024} sc1")
            e(f"L_pi{k}:")
        e("    s_waitcnt vmcnt(0)")
        for k in range(4):
            g = vG(k)
            e(f"    s_bitcmp1_b32 s57, {k}")
            e(f"    s_cbranch_scc0 L_pc{k}")
            e(f"    v_cmp_ne_u32 vcc, v7, v{g+3}")
            e(f"    v_cmp_ne_u32 s[46:47], v7, v{g+7}")
            e(f"    v_max_f32 v14, v{SM}, v{g+5}")
            e(f"    s_or_b64 vcc, vcc, s[46:47]")
            e(f"    s_cbranch_scc1 L_pc{k}")
            e(f"    v_sub_f32 v16, v{SM}, v14")
            e(f"    v_sub_f32 v17, v{g+5}, v14")
            e(f"    v_exp_f32 v16, v16")
            e(f"    v_exp_f32 v17, v17")
            e(f"    v_mov_b32 v{SM}, v14")
            e(f"    s_bitset0_b32 s57, {k}")
            e(f"    v_mul_f32 v{SL}, v{SL}, v16")
            for q in range(4): e(f"    v_mul_f32 v{SO[q]}, v{SO[q]}, v16")
            e(f"    v_fmac_f32 v{SL}, v{g+6}, v17")
            for q, src in enumerate([g, g+1, g+2, g+4]): e(f"    v_fmac_f32 v{SO[q]}, v{src}, v17")
            e(f"L_pc{k}:")
        e(f"    s_sub_u32 s59, s59, 1")
        e(f"    s_cselect_b32 s57, 0, s57")
        e(f"    s_cmp_lg_u32 s57, 0")
        e("    s_cbranch_scc1 L_poll")
        st(8)
        e(f"    v_mov_b32 v16, v4")
        e(f"    v_mov_b32 v17, v5")
        e(f"    v_mov_b32 v18, v6")
        e(f"    v_mov_b32 v19, v8")
        e(f"    v_mov_b32 v20, v{SM}")
        e(f"    v_mov_b32 v21, v{SL}")
        e(f"    ds_write_b128 v{vX}, v[16:19] offset:2048")
        e(f"    ds_write_b64 v{vY}, v[20:21] offset:3072")
        e(f"    v_add_u32 v{vRa}, 0x800, v{vRa}")
        e(f"    v_add_u32 v{vRb}, 0x800, v{vRb}")
        e(f"    s_mov_b32 s55, 1")
        e("    s_branch L_sync")
        e("L_out:")
        st(9)
        e(f"    v_rcp_f32 v{SL}, v{SL}")
        e(f"    v_lshrrev_b32 v14, 5, v{vLane}")
        e(f"    v_and_b32 v12, 15, v{vLane}")
        e(f"    v_bfe_u32 v13, v{vLane}, 4, 1")
        for k in range(4): e(f"    v_mul_f32 v{SO[k]}, v{SO[k]}, v{SL}")
        e(f"    v_lshlrev_b32 v12, 4, v12")
        e(f"    v_lshl_add_u32 v12, v13, 3, v12")
        e(f"    v_lshl_add_u32 v12, v14, 8, v12")
        e(f"    s_lshl_b32 s34, s{sHead}, 9")
        e(f"    v_add_u32 v12, s34, v12")
        e("    v_cvt_pk_bf16_f32 v4, v4, v5")
        e("    v_cvt_pk_bf16_f32 v5, v6, v8")
        st(10)
        e("    global_store_dwordx2 v12, v[4:5], s[16:17]")
        if stamp: e("    s_waitcnt vmcnt(0)")
        st(11)
    else:
        e(f"    ds_write_b128 v{vX}, {rr(vO,4)}")
        e(f"    ds_write_b64 v{vY}, {rr(vA,2)} offset:1024")
        e("    s_waitcnt vmcnt(0) lgkmcnt(0)")
        e("    s_barrier")
        st(6)
        e(f"    s_cmp_lg_u32 s{sWave}, 0")
        e("    s_cbranch_scc1 L_fin")
        vOj = lambda j: 48 + 4 * j
        vml = lambda j: 16 + 2 * j
        def merge(n, waitfmt):
            e(f"    {waitfmt}")
            e(f"    v_max_f32 v8, v{vml(0)}, v{vml(1)}")
            for j in range(2, n, 2): e(f"    v_max3_f32 v8, v{vml(j)}, v{vml(j+1)}, v8")
            for j in range(n): e(f"    v_sub_f32 v{vml(j)}, v{vml(j)}, v8")
            for j in range(n): e(f"    v_exp_f32 v{vml(j)}, v{vml(j)}")
            e("    s_nop 0")
            e(f"    v_mul_f32 v9, v{vml(0)}, v{vml(0)+1}")
            for k in range(4): e(f"    v_mul_f32 v{4+k}, v{vml(0)}, v{vOj(0)+k}")
            for j in range(1, n):
                e(f"    v_fmac_f32 v9, v{vml(j)}, v{vml(j)+1}")
                for k in range(4): e(f"    v_fmac_f32 v{4+k}, v{vml(j)}, v{vOj(j)+k}")
        for j in range(NW):
            e(f"    ds_read_b64 {rr(vml(j),2)}, v{vT} offset:{j*4096+1024}")
            e(f"    ds_read_b128 {rr(vOj(j),4)}, v{vVoff} offset:{j*4096}")
        e(f"    s_mul_i32 s34, s{sHead}, {S*1536}")
        e(f"    s_add_u32 s24, s20, s34")
        e(f"    s_addc_u32 s25, s21, 0")
        e(f"    s_mov_b32 s26, {S*1536}")
        e(f"    s_lshl_b32 s35, s{sSplit}, 10")
        e(f"    s_lshl_b32 s36, s{sSplit}, 9")
        e(f"    s_add_u32 s36, s36, {S*1024}")
        e(f"    s_lshl_b32 s37, s{sHead}, 4")
        merge(NW, "s_waitcnt lgkmcnt(0)")
        st(7)
        e(f"    buffer_store_dwordx4 v[4:7], v{vVoff}, s[24:27], s35 offen sc1")
        e(f"    buffer_store_dwordx2 v[8:9], v{vT}, s[24:27], s36 offen sc1")
        e(f"    v_mov_b32 v10, s37")
        e(f"    v_mov_b32 v11, 1")
        e("    s_mov_b64 exec, 1")
        e("    s_waitcnt vmcnt(0)")
        e(f"    global_atomic_add v12, v10, v11, s[18:19] sc0")
        e("    s_waitcnt vmcnt(0)")
        e(f"    v_readfirstlane_b32 s38, v12")
        e("    s_mov_b64 exec, -1")
        e("    s_nop 1")
        st(8)
        e(f"    s_cmp_lg_u32 s38, {S-1}")
        e("    s_cbranch_scc1 L_fin")
        for b in range(0, S, 4): e(f"    s_movk_i32 s{40+b//4}, {b*1024}")
        for b in range(0, S, 8): e(f"    s_mov_b32 s{48+b//8}, {S*1024 + b*512}")
        for j in range(S):
            e(f"    buffer_load_dwordx2 {rr(vml(j),2)}, v{vT}, s[24:27], s{48+j//8} offen offset:{(j%8)*512} sc1")
        for j in range(S):
            e(f"    buffer_load_dwordx4 {rr(vOj(j),4)}, v{vVoff}, s[24:27], s{40+j//4} offen offset:{(j%4)*1024} sc1")
        e(f"    v_lshrrev_b32 v12, 5, v{vLane}")
        e(f"    v_and_b32 v10, 15, v{vLane}")
        e(f"    v_bfe_u32 v11, v{vLane}, 4, 1")
        e(f"    v_lshlrev_b32 v10, 4, v10")
        e(f"    v_lshl_add_u32 v10, v11, 3, v10")
        e(f"    v_lshl_add_u32 v10, v12, 8, v10")
        e(f"    s_lshl_b32 s34, s{sHead}, 9")
        e(f"    v_add_u32 v10, s34, v10")
        if stamp:
            e("    s_waitcnt vmcnt(0)")
            st(9)
        merge(S, "s_waitcnt vmcnt(0)")
        e("    v_rcp_f32 v9, v9")
        e("    s_nop 0")
        for k in range(4): e(f"    v_mul_f32 v{4+k}, v{4+k}, v9")
        e("    v_cvt_pk_bf16_f32 v4, v4, v5")
        e("    v_cvt_pk_bf16_f32 v5, v6, v7")
        st(10)
        e("    global_store_dwordx2 v10, v[4:5], s[16:17]")
        if stamp: e("    s_waitcnt vmcnt(0)")
        st(11)
    e("L_fin:")
    if stamp:
        e("    s_waitcnt lgkmcnt(0)")
        e(f"    s_mul_i32 s58, s2, {NW}")
        e(f"    s_add_u32 s58, s58, s{sWave}")
        e(f"    s_mul_i32 s58, s58, {8*NST}")
        e(f"    s_add_u32 s58, s58, 0x100000")
        e(f"    v_mov_b32 v110, s58")
        for k in range(2 * NST): e(f"    v_mov_b32 v{80+k}, s{60+k}")
        e("    s_mov_b64 exec, 1")
        for k in range(NST // 2): e(f"    global_store_dwordx4 v110, v[{80+4*k}:{83+4*k}], s[20:21] offset:{16*k}")
    e("L_end:")
    e("    s_endpgm")
    e('.section .rodata,"a"'); e(".p2align 6"); e(f".amdhsa_kernel {KNAME}")
    e(f"  .amdhsa_next_free_vgpr {nvgpr}")
    e(f"  .amdhsa_next_free_sgpr {88 if stamp else 60}")
    e(f"  .amdhsa_accum_offset {nvgpr}")
    e("  .amdhsa_group_segment_fixed_size 0"); e("  .amdhsa_kernarg_size 72"); e("  .amdhsa_user_sgpr_count 2")
    e("  .amdhsa_user_sgpr_kernarg_segment_ptr 1"); e("  .amdhsa_system_sgpr_workgroup_id_x 1")
    e("  .amdhsa_float_denorm_mode_32 3")
    e(".end_amdhsa_kernel")
    return "\n".join(o) + "\n"

if __name__ == "__main__":
    ap = argparse.ArgumentParser()
    ap.add_argument("--lay", default="iiwwttsttssst"); ap.add_argument("--a", type=int, default=5); ap.add_argument("--a2", type=int, default=0)
    ap.add_argument("--pol", default="nt"); ap.add_argument("--stamp", action="store_true")
    ap.add_argument("--ldsmin", type=int, default=0); ap.add_argument("--splitmajor", action="store_true")
    ap.add_argument("--tail", default="poll")
    ap.add_argument("--noxcc", action="store_true")
    ap.add_argument("-o", default="-")
    a = ap.parse_args()
    s = gen(a.lay, a.a, a.pol, tail=a.tail, stamp=a.stamp, ldsmin=a.ldsmin, splitmajor=a.splitmajor, A2=a.a2, xcc=not a.noxcc)
    (sys.stdout if a.o == "-" else open(a.o, "w")).write(s)
```

```python
import sys, argparse, math, struct
sys.path.insert(0, 'gen')
from gen1 import KNAME, HEADER
f2u = lambda x: struct.unpack("<I", struct.pack("<f", x))[0]
LOG2E = math.log2(math.e)

def gen(layout="iiwwttststsst", L1="55565556", L2="55565556", pol="nt", stamp=False, wgmap="sm", qpos=1, outpol="", warm=1, helper=False, pbar="", spol="", lbar=""):
    NW, NWG = 4, 256
    L1 = [int(c) for c in L1]; L2 = [int(c) for c in L2]
    A, A2 = L1[7], L2[7]
    assert A2 >= A
    def sched(L, j):
        prev = L[j - 1] + j - 1 if j else L[7] - 1
        return list(range(prev + 1, L[j] + j + 1)), prev - j
    bits = lambda c: [k for k, x in enumerate(layout) if x == c]
    bi, bw, bt, bs = bits("i"), bits("w"), bits("t"), bits("s")
    assert bi == [0, 1] and len(bw) == 2 and len(bs) == 4 and len(bt) == 5
    lds = NW * 4096 + 512
    o = []; e = o.append
    e(HEADER.rstrip("\n"))
    e(f"; @launch grid=({NWG},1,1) block=({NW*64},1,1) lds={lds}")
    e('.amdgcn_target "amdgcn-amd-amdhsa--gfx950"')
    e(".text"); e(f".globl {KNAME}"); e(".p2align 8"); e(f".type {KNAME},@function"); e(f"{KNAME}:")
    vLane, vKoff, vVoff = 1, 2, 3
    vQ, vM = 4, 8
    vC, vm, vl, vT = 12, 13, 14, 15
    vO, vS, vZ = 16, 20, 36
    vA, vB, vX, vY = 40, 41, 42, 43
    vP, vR = 44, 48
    vZA, vZB = 80, 84
    vN, vLa, vZt, vD = 88, 89, 90, 91
    vML = 92
    vWa, vWb, vOut = 94, 95, 96
    nvgpr = 104 if not stamp else 128
    rr = lambda a, n: f"v[{a}:{a+n-1}]"
    sHead, sSplit, sWave = 22, 23, 3
    sFix, sTs, sCnt, sTag, sXcc = 35, 37, 39, 56, 58
    NST = 12
    def st(k):
        if stamp: e(f"    s_memrealtime s[{60+2*k}:{61+2*k}]")
    if stamp:
        for k in range(62, 60 + 2 * NST): e(f"    s_mov_b32 s{k}, 0")
    st(0)
    e("    s_load_dwordx16 s[4:19], s[0:1], 0")
    e("    s_load_dwordx2 s[20:21], s[0:1], 64")
    e("    s_memrealtime s[54:55]")
    e(f"    v_lshrrev_b32 v{vT}, 6, v0")
    e(f"    v_and_b32 v{vLane}, 63, v0")
    e(f"    v_readfirstlane_b32 s{sWave}, v{vT}")
    e(f"    s_cmp_ge_u32 s2, {NWG}")
    e("    s_cbranch_scc1 L_end")
    if wgmap == "sm":
        e(f"    s_and_b32 s{sHead}, s2, 15"); e(f"    s_lshr_b32 s{sSplit}, s2, 4")
    elif wgmap == "sm2":
        e(f"    s_and_b32 s{sHead}, s2, 7"); e(f"    s_bfe_u32 s36, s2, 0x10003"); e(f"    s_lshl_b32 s{sHead}, s{sHead}, 1")
        e(f"    s_or_b32 s{sHead}, s{sHead}, s36"); e(f"    s_lshr_b32 s{sSplit}, s2, 4")
    elif wgmap == "sm3":
        e(f"    s_and_b32 s{sHead}, s2, 7"); e(f"    s_lshr_b32 s36, s2, 7"); e(f"    s_lshl_b32 s36, s36, 3")
        e(f"    s_or_b32 s{sHead}, s{sHead}, s36"); e(f"    s_bfe_u32 s{sSplit}, s2, 0x40003")
    else:
        e(f"    s_lshr_b32 s{sHead}, s2, 4"); e(f"    s_and_b32 s{sSplit}, s2, 15")
    e(f"    v_lshrrev_b32 v{vX}, 4, v{vLane}               ; g")
    e(f"    v_and_b32 v{vY}, 3, v{vLane}                   ; j4")
    e(f"    v_lshlrev_b32 v{vX}, 6, v{vX}")
    e(f"    v_lshl_add_u32 v{vX}, v{vY}, 4, v{vX}          ; g*64 + j4*16")
    e(f"    v_bfe_u32 v{vY}, v{vLane}, 2, 2                ; m")
    e(f"    v_lshl_add_u32 v{vKoff}, v{vY}, 8, v{vX}")
    first = True
    for src, bl in ((sSplit, bs), (sWave, bw)):
        j = 0
        while j < len(bl):
            n = 1
            while j + n < len(bl) and bl[j + n] == bl[j] + n: n += 1
            dst = 44 if first else 36
            e(f"    s_bfe_u32 s{dst}, s{src}, {j | (n << 16):#x}")
            e(f"    s_lshl_b32 s{dst}, s{dst}, {bl[j] + 10}")
            if not first: e(f"    s_or_b32 s44, s44, s36")
            first = False
            j += n
    tmask = sum(1 << (b + 10) for b in bt)
    tsc = lambda t: sum(((t >> j) & 1) << (b + 10) for j, b in enumerate(bt))
    e(f"    s_lshl_b32 s34, s{sHead}, 23")
    e(f"    s_lshl_b32 s38, s{sHead}, 9                    ; head * 512")
    e("    s_mov_b32 s26, 0x800000")
    e("    s_mov_b32 s27, 0x20000")
    e(f"    s_or_b32 s45, s44, {tsc(1):#x}")
    e(f"    v_bfe_u32 v{vY}, v{vLane}, 3, 1                ; h (p layout)")
    e(f"    v_lshl_add_u32 v{vB}, v{vY}, 8, v{vX}")
    e(f"    v_add_u32 v{vB}, s38, v{vB}                    ; q offset")
    e(f"    s_getreg_b32 s{sXcc}, hwreg(HW_REG_XCC_ID, 0, 4)")
    e(f"    s_lshl_b32 s36, s{sSplit}, 2")
    e(f"    s_add_u32 s36, s36, s{sWave}")
    e(f"    s_cmp_lg_u32 s36, 1")
    e("    s_waitcnt lgkmcnt(0)")
    st(1)
    e(f"    s_cbranch_scc0 L_owner")
    e("L_start:")
    if warm:
        e(f"    s_cmp_lg_u32 s{sWave}, 0")
        e(f"    s_cbranch_scc1 L_nowarm")
        e(f"    v_mov_b32 v{vT}, 0")
        e(f"    global_load_dword v{vZA}, v{vT}, s[20:21]")
        if warm > 1: e(f"    global_load_dword v{vZA+1}, v{vT}, s[16:17]")
        e("L_nowarm:")
    e(f"    s_add_u32 s24, s6, s34")
    e(f"    s_addc_u32 s25, s7, 0")
    def ld(pos, srd, vo, nxt):
        so = (46 if nxt else 44) + pos // 4
        off = f" offset:{1024*(pos%4)}" if pos % 4 else ""
        e(f"    buffer_load_dwordx4 {rr(vR+4*pos,4)}, v{vo}, {srd}, s{so} offen{off} {pol}".rstrip())
    for p in range(A):
        if p == qpos: e(f"    global_load_dwordx4 {rr(vQ,4)}, v{vB}, s[4:5]")
        ld(p, "s[24:27]", vKoff, False)
        if str(p) in pbar: e("    s_barrier")
    e(f"    s_add_u32 s28, s8, s34")
    e(f"    s_addc_u32 s29, s9, 0")
    e("    s_mov_b32 s30, 0x800000")
    e("    s_mov_b32 s31, 0x20000")
    e("    s_mov_b64 s[48:49], s[24:25]")
    e("    s_mov_b32 s50, 0x800000")
    e("    s_mov_b32 s51, 0x20000")
    e(f"    s_mov_b32 s{sFix}, s44")
    e(f"    s_or_b32 s46, s44, {tsc(2):#x}")
    e(f"    s_or_b32 s47, s44, {tsc(3):#x}")
    e(f"    s_mov_b32 s{sTs}, {tsc(3):#x}")
    e(f"    v_lshlrev_b32 v{vVoff}, 4, v{vLane}")
    e(f"    v_mov_b32 v{vN}, v{vKoff}")
    e(f"    s_lshl_b32 s34, s{sWave}, 12")
    e(f"    v_lshrrev_b32 v{vLa}, 3, v{vLane}")
    e(f"    v_lshlrev_b32 v{vLa}, 4, v{vLa}")
    e(f"    v_add_u32 v{vLa}, s34, v{vLa}")
    e(f"    v_lshlrev_b32 v{vT}, 3, v{vLane}               ; lane*8")
    e(f"    v_add_u32 v{vWa}, s34, v{vVoff}")
    e(f"    v_add_u32 v{vWb}, s34, v{vT}")
    e(f"    v_and_b32 v{vA}, 1, v{vLane}")
    e(f"    v_lshlrev_b32 v{vA}, 4, v{vA}")
    e(f"    v_mov_b32 v{vB}, 0xffff")
    e(f"    v_lshlrev_b32 v{vB}, v{vA}, v{vB}")
    e(f"    v_bfe_u32 v{vA}, v{vLane}, 1, 2")
    for k in range(4):
        e(f"    v_cmp_eq_u32 vcc, {k}, v{vA}")
        e(f"    s_nop 1")
        e(f"    v_cndmask_b32 v{vM+k}, 0, v{vB}, vcc")
    e(f"    v_and_b32 v{vOut}, 15, v{vLane}")
    e(f"    v_bfe_u32 v{vA}, v{vLane}, 4, 1")
    e(f"    v_lshlrev_b32 v{vOut}, 4, v{vOut}")
    e(f"    v_lshl_add_u32 v{vOut}, v{vA}, 3, v{vOut}")
    e(f"    v_lshrrev_b32 v{vA}, 5, v{vLane}")
    e(f"    v_lshl_add_u32 v{vOut}, v{vA}, 8, v{vOut}")
    e(f"    v_add_u32 v{vOut}, s38, v{vOut}")
    c = (128 ** -0.5) * LOG2E
    e(f"    v_mov_b32 v{vC}, 0x{f2u(c):08x}                ; scale*log2(e)")
    e(f"    s_mov_b32 s{sCnt}, 16")
    e(f"    s_mov_b32 s52, 0x01010101")
    e(f"    s_mov_b32 s53, 0x01010101")
    e(f"    s_lshl_b32 s33, s{sHead}, 2")
    e(f"    s_lshl_b32 s34, s{sHead}, 15")
    e(f"    s_mov_b32 s42, 0x8000")
    e(f"    s_mov_b32 s43, 0x20000")
    e(f"    s_lshl_b32 s54, s{sSplit}, 11")
    e(f"    s_mov_b32 s59, 0x40000")
    e(f"    v_mov_b32 v{vD}, s33")
    e(f"    s_add_u32 s40, s20, s34")
    e(f"    s_addc_u32 s41, s21, 0")
    e(f"    s_cmp_lg_u32 s36, 1")
    e(f"    s_cbranch_scc0 L_tree")
    e(f"    v_mov_b32 v{vm}, 0xff7fffff                    ; -FLT_MAX")
    for k in range(4): e(f"    v_mov_b32 v{vO+k}, 0")
    e("L_treedone:")
    e(f"    v_mov_b32 v{vZt}, v{vm}")
    if stamp: e(f"    s_waitcnt vmcnt({A-1})")
    st(3)
    def advance():
        e("    s_mov_b64 s[44:45], s[46:47]")
        for d in (46, 47):
            e(f"    s_or_b32 s{sTs}, s{sTs}, {(~tmask) & 0xffffffff:#x}")
            e(f"    s_add_u32 s{sTs}, s{sTs}, 1")
            e(f"    s_and_b32 s{sTs}, s{sTs}, {tmask:#x}")
            e(f"    s_or_b32 s{d}, s{sTs}, s{sFix}")
        e(f"    s_sub_u32 s{sCnt}, s{sCnt}, 1")
        e(f"    s_cmp_lg_u32 s{sCnt}, 0")
    e("L_k:")
    e(f"    s_cmp_lg_u32 s{sCnt}, 1")
    e("    s_cbranch_scc1 L_k1")
    e("    s_mov_b64 s[48:49], s[28:29]")
    e(f"    v_mov_b32 v{vN}, v{vVoff}")
    e(f"    s_load_dword s{sTag}, s[18:19], s33")
    e("L_k1:")
    if "k" in lbar: e("    s_barrier")
    def z(i, j):
        op = "v_mul_f32_dpp" if j == 0 else "v_fmac_f32_dpp"
        e(f"    {op} v{vZ+i}, v{vS+4*i+j}, v{vC} quad_perm:[{j},{j},{j},{j}] row_mask:0xf bank_mask:0xf")
    for half in range(2):
        for j in range(4 * half, 4 * half + 4):
            ps, w = sched(L1, j)
            e(f"    s_waitcnt vmcnt({w})")
            e(f"    v_mfma_f32_16x16x32_bf16 {rr(vS+4*(j%4),4)}, {rr(vR+4*j,4)}, {rr(vQ,4)}, 0")
            for p in ps:
                if p < 8: ld(p, "s[24:27]", vKoff, False)
                else: ld(p - 8, "s[48:51]", vN, True)
        n = [len(sched(L1, 4 * half + q)[0]) for q in range(4)]
        need = max(8 - 5 - n[3], 8 - 2 - (n[2] + 2 + n[3]), 8 - 1 - (n[1] + n[2] + n[3] + 4), 8 - (sum(n) + 6), 0)
        if need: e(f"    s_nop {need-1}")
        for (i, j) in [(0,0),(1,0),(2,0),(0,1),(1,1),(3,0),(2,1),(0,2),(1,2),(3,1),(2,2),(0,3),(1,3),(3,2),(2,3)]:
            z(i, j)
        e(f"    v_max3_f32 v{vm}, v{vZ}, v{vZ+1}, v{vm}")
        z(3, 3)
        e(f"    v_max3_f32 v{vm}, v{vZ+2}, v{vZ+3}, v{vm}")
        e("    s_mov_b64 exec, s[52:53]")
        e(f"    ds_write_b128 v{vLa}, {rr(vZ,4)}" + (" offset:128" if half else ""))
        e("    s_mov_b64 exec, -1")
        if "K" in lbar and half == 0: e("    s_barrier")
    e(f"    v_add_u32 v{vLa}, 0x100, v{vLa}")
    advance()
    e("    s_cbranch_scc1 L_k")
    st(4)
    if "b" in lbar: e("    s_barrier")
    for p in range(A, A2): ld(p, "s[28:31]", vVoff, False)
    e(f"    v_subrev_u32 v{vLa}, 0x1000, v{vLa}")
    e(f"    v_mov_b32 v{vY}, v{vm}")
    e("    s_waitcnt lgkmcnt(0)")
    e(f"    ds_read_b128 {rr(vZA,4)}, v{vLa}")
    e(f"    ds_read_b128 {rr(vZB,4)}, v{vLa} offset:128")
    e(f"    v_permlane32_swap_b32 v{vY}, v{vm}")
    e(f"    v_max_f32 v{vm}, v{vY}, v{vm}")
    e(f"    v_mov_b32 v{vY}, v{vm}")
    e(f"    v_cmp_gt_u32 vcc, 16, v{vLane}")
    e(f"    s_mov_b32 s{sCnt}, 16")
    e(f"    v_permlane16_swap_b32 v{vY}, v{vm}")
    e(f"    v_max_f32 v{vm}, v{vY}, v{vm}")
    e(f"    v_sub_f32 v{vA}, v{vZt}, v{vm}")
    e(f"    v_mov_b32 v{vML}, v{vm}")
    e(f"    v_exp_f32 v{vA}, v{vA}")
    e("    s_nop 0")
    e(f"    v_mov_b32 v{vB}, v{vA}")
    e(f"    v_cndmask_b32 v{vl}, 0, v{vA}, vcc")
    e(f"    v_mov_b32_dpp v{vML}, v{vm} row_ror:8 row_mask:0x3 bank_mask:0xc")
    e(f"    v_mov_b32_dpp v{vB}, v{vA} row_ror:8 row_mask:0x3 bank_mask:0xc")
    e("    s_nop 0")
    e(f"    v_mov_b32_dpp v{vML}, v{vm} row_ror:8 row_mask:0xc bank_mask:0x3")
    e(f"    v_mov_b32_dpp v{vB}, v{vA} row_ror:8 row_mask:0xc bank_mask:0x3")
    for k in range(4): e(f"    v_mul_f32 v{vO+k}, v{vO+k}, v{vB}")
    e("L_v:")
    e(f"    s_cmp_eq_u32 s{sCnt}, 1")
    e(f"    s_cselect_b32 s50, 0, s50")
    if "v" in lbar: e("    s_barrier")
    for half in range(2):
        vZr = vZB if half else vZA
        if "V" in lbar and half == 1: e("    s_barrier")
        e("    s_waitcnt lgkmcnt(1)")
        for i in range(4): e(f"    v_sub_f32 v{vZ+i}, v{vZr+i}, v{vm}")
        e(f"    ds_read_b128 {rr(vZr,4)}, v{vLa} offset:{256 + 128*half}")
        for i in range(4): e(f"    v_exp_f32 v{vZ+i}, v{vZ+i}")
        e(f"    v_add_f32 v{vl}, v{vl}, v{vZ}")
        for i in range(4): e(f"    v_cvt_pk_bf16_f32 v{vP+i}, v{vZ+i}, v{vZ+i}")
        e(f"    v_add_f32 v{vX}, v{vZ+1}, v{vZ+2}")
        e(f"    v_add_f32 v{vl}, v{vl}, v{vZ+3}")
        for i in range(4):
            for k in range(4): e(f"    v_and_b32 v{vS+4*i+k}, v{vP+i}, v{vM+k}")
        e(f"    v_add_f32 v{vl}, v{vl}, v{vX}")
        if half == 1:
            e("    s_cbranch_scc0 L_v1")
            e(f"    v_mov_b32 v{vY}, v{vl}")
            e("    s_nop 1")
            e(f"    v_permlane32_swap_b32 v{vY}, v{vl}")
            e(f"    v_add_f32 v{vl}, v{vY}, v{vl}")
            e(f"    v_mov_b32 v{vY}, v{vl}")
            e("    s_nop 1")
            e(f"    v_permlane16_swap_b32 v{vY}, v{vl}")
            e(f"    v_add_f32 v{vl}, v{vY}, v{vl}")
            e(f"    v_mov_b32 v{vML+1}, v{vl}")
            e("    s_nop 1")
            e(f"    v_mov_b32_dpp v{vML+1}, v{vl} row_ror:8 row_mask:0x3 bank_mask:0xc")
            e("    s_nop 1")
            e(f"    v_mov_b32_dpp v{vML+1}, v{vl} row_ror:8 row_mask:0xc bank_mask:0x3")
            e(f"    ds_write_b64 v{vWb}, {rr(vML,2)} offset:1024")
            e(f"    s_cmp_eq_u32 s{sTag}, 0")
            e("    s_cbranch_scc1 L_waittag")
            e("L_havetag:")
            e(f"    v_mov_b32 v7, s{sTag}")
            e("L_v1:")
        for j in range(4 * half, 4 * half + 4):
            ps, w = sched(L2, j)
            e(f"    s_waitcnt vmcnt({w})")
            e(f"    v_mfma_f32_16x16x32_bf16 {rr(vO,4)}, {rr(vS+4*(j%4),4)}, {rr(vR+4*j,4)}, {rr(vO,4)}")
            for p in ps:
                if p < 8: ld(p, "s[28:31]", vVoff, False)
                else: ld(p - 8, "s[48:51]", vVoff, True)
    e(f"    v_add_u32 v{vLa}, 0x100, v{vLa}")
    advance()
    e("    s_cbranch_scc1 L_v")
    st(5)
    SO = [4, 5, 6, 8]; SM, SL = 9, 10
    vml = lambda j: 20 + 2 * j
    vOj = lambda j: 28 + 4 * j
    VERD = NW * 4096 + 256
    def merge4(off):
        for j in range(NW):
            e(f"    ds_read_b64 {rr(vml(j),2)}, v{vT} offset:{j*4096+1024+off}")
        for j in range(NW):
            e(f"    ds_read_b128 {rr(vOj(j),4)}, v{vVoff} offset:{j*4096+off}")
        e("    s_waitcnt lgkmcnt(4)")
        e(f"    v_max_f32 v{SM}, v{vml(0)}, v{vml(1)}")
        e(f"    v_max3_f32 v{SM}, v{vml(2)}, v{vml(3)}, v{SM}")
        for j in range(4): e(f"    v_sub_f32 v{vml(j)}, v{vml(j)}, v{SM}")
        for j in range(4): e(f"    v_exp_f32 v{vml(j)}, v{vml(j)}")
        e("    s_waitcnt lgkmcnt(0)")
        e(f"    v_mul_f32 v{SL}, v{vml(0)}, v{vml(0)+1}")
        for k in range(4): e(f"    v_mul_f32 v{SO[k]}, v{vml(0)}, v{vOj(0)+k}")
        for j in range(1, 4):
            e(f"    v_fmac_f32 v{SL}, v{vml(j)}, v{vml(j)+1}")
            for k in range(4): e(f"    v_fmac_f32 v{SO[k]}, v{vml(j)}, v{vOj(j)+k}")
    def merge1(g, lab, clear):
        e(f"    v_cmp_ne_u32 vcc, v7, v{g+3}")
        e(f"    v_cmp_ne_u32 s[46:47], v7, v{g+7}")
        e(f"    v_max_f32 v14, v{SM}, v{g+5}")
        e(f"    s_or_b64 vcc, vcc, s[46:47]")
        e(f"    s_cbranch_scc1 {lab}")
        e(f"    v_sub_f32 v16, v{SM}, v14")
        e(f"    v_sub_f32 v17, v{g+5}, v14")
        e(f"    v_exp_f32 v16, v16")
        e(f"    v_exp_f32 v17, v17")
        e(f"    v_mov_b32 v{SM}, v14")
        e(f"    {clear}")
        e(f"    v_mul_f32 v{SL}, v{SL}, v16")
        for q in range(4): e(f"    v_mul_f32 v{SO[q]}, v{SO[q]}, v16")
        e(f"    v_fmac_f32 v{SL}, v{g+6}, v17")
        for q, src in enumerate([g, g+1, g+2, g+4]): e(f"    v_fmac_f32 v{SO[q]}, v{src}, v17")
        e(f"{lab}:")
    vG = lambda k: 48 + 8 * k
    e(f"    ds_write_b128 v{vWa}, {rr(vO,4)}")
    e(f"    v_mov_b32 v11, v7")
    e(f"    s_and_b32 s34, s{sTag}, 15")
    e(f"    s_xor_b32 s55, s34, s{sXcc}")
    e(f"    s_cmp_eq_u32 s{sWave}, 0")
    e("    s_waitcnt lgkmcnt(0)")
    e("    s_barrier")
    st(6)
    e("    s_cbranch_scc0 L_other")
    merge4(0)
    st(7)
    e(f"    s_cmp_lg_u32 s55, 0")
    e("    s_cbranch_scc1 L_far")
    e(f"    buffer_store_dwordx4 v[4:7], v3, s[40:43], s54 offen {spol}")
    e(f"    buffer_store_dwordx4 v[8:11], v3, s[40:43], s54 offen offset:1024 {spol}")
    e("    s_branch L_vote")
    e("L_far:")
    e(f"    buffer_store_dwordx4 v[4:7], v3, s[40:43], s54 offen sc1")
    e(f"    buffer_store_dwordx4 v[8:11], v3, s[40:43], s54 offen offset:1024 sc1")
    e("    s_branch L_fin")
    e("L_other:")
    e(f"    s_cmp_lg_u32 s55, 0")
    e("    s_cbranch_scc1 L_fin")
    e(f"    v_mov_b32 v{SM}, 0xff7fffff")
    e(f"    v_mov_b32 v{SL}, 0")
    for k in SO: e(f"    v_mov_b32 v{k}, 0")
    e(f"    s_cmp_lg_u32 s{sWave}, 1")
    e("    s_cbranch_scc1 L_vote")
    e(f"    s_mul_i32 s34, s{sHead}, 12")
    e(f"    v_mov_b32 v12, s34")
    e(f"    v_mov_b32 v13, 1")
    e(f"    v_mov_b32 v14, {VERD}")
    e("    s_mov_b64 exec, 1")
    e(f"    global_atomic_add v16, v12, v13, s[18:19] offset:64 sc0")
    e(f"    v_mov_b32 v17, 0xffff")
    e("    s_waitcnt vmcnt(0)")
    e(f"    ds_write_b64 v14, v[16:17]")
    e("    s_mov_b64 exec, -1")
    e("    s_waitcnt lgkmcnt(0)")
    e("L_vote:")
    e(f"    v_mov_b32 v14, {VERD}")
    e(f"    s_lshl_b32 s44, s{sWave}, 13")
    e(f"    s_add_u32 s45, s44, 4096")
    e(f"    s_lshl_b32 s34, s{sWave}, 2")
    e(f"    s_sub_u32 s34, s{sSplit}, s34")
    e(f"    s_lshl_b32 s34, 1, s34")
    e(f"    s_andn2_b32 s57, 15, s34")
    e("    s_barrier")
    e(f"    ds_read_b32 v12, v14")
    e("    s_waitcnt lgkmcnt(0)")
    e(f"    v_readfirstlane_b32 s34, v12")
    e("    s_nop 0")
    e(f"    s_cmp_lg_u32 s34, 0")
    e("    s_cbranch_scc1 L_fin")
    st(2)
    e("L_poll:")
    for k in range(4):
        e(f"    s_bitcmp1_b32 s57, {k}")
        e(f"    s_cbranch_scc0 L_pi{k}")
        e(f"    buffer_load_dwordx4 {rr(vG(k),4)}, v3, s[40:43], s{44+k//2} offen offset:{(k%2)*2048} sc1")
        e(f"    buffer_load_dwordx4 {rr(vG(k)+4,4)}, v3, s[40:43], s{44+k//2} offen offset:{(k%2)*2048+1024} sc1")
        e(f"L_pi{k}:")
    e("    s_waitcnt vmcnt(0)")
    for k in range(4):
        e(f"    s_bitcmp1_b32 s57, {k}")
        e(f"    s_cbranch_scc0 L_pc{k}")
        merge1(vG(k), f"L_pc{k}", f"s_bitset0_b32 s57, {k}")
    e(f"    s_sub_u32 s59, s59, 1")
    e(f"    s_cselect_b32 s57, 0, s57")
    e(f"    s_cmp_lg_u32 s57, 0")
    e("    s_cbranch_scc1 L_poll")
    st(8)
    e(f"    v_mov_b32 v20, v{SM}")
    e(f"    v_mov_b32 v21, v{SL}")
    e(f"    v_mov_b32 v7, v8")
    e(f"    ds_write_b64 v{vWb}, v[20:21] offset:3072")
    e(f"    ds_write_b128 v{vWa}, v[4:7] offset:2048")
    e(f"    s_cmp_eq_u32 s{sWave}, 0")
    e("    s_waitcnt lgkmcnt(0)")
    e("    s_barrier")
    e("    s_cbranch_scc0 L_fin")
    merge4(2048)
    st(9)
    e(f"    v_rcp_f32 v{SL}, v{SL}")
    e("    s_nop 0")
    for k in range(4): e(f"    v_mul_f32 v{SO[k]}, v{SO[k]}, v{SL}")
    e("    v_cvt_pk_bf16_f32 v4, v4, v5")
    e("    v_cvt_pk_bf16_f32 v5, v6, v8")
    st(10)
    e(f"    global_store_dwordx2 v{vOut}, v[4:5], s[16:17] {outpol}".rstrip())
    if stamp: e("    s_waitcnt vmcnt(0)")
    st(11)
    e("    s_branch L_fin")
    e("L_owner:")
    e(f"    s_lshl_b32 s54, s54, 4")
    e(f"    s_or_b32 s54, s54, s{sXcc}")
    e(f"    s_bitset1_b32 s54, 31")
    e(f"    s_lshl_b32 s33, s{sHead}, 2")
    e(f"    v_mov_b32 v{vD}, s33")
    e(f"    v_mov_b32 v{vA}, s54")
    e(f"    s_lshl_b32 s33, s{sHead}, 8")
    e(f"    v_add_u32 v{vX}, s33, v{vX}")
    e(f"    v_and_b32 v{vZ}, 15, v{vLane}")
    e(f"    v_bfe_u32 v{vY}, v{vLane}, 4, 1")
    e(f"    v_lshlrev_b32 v{vZ}, 4, v{vZ}")
    e(f"    v_lshl_add_u32 v{vZ}, v{vY}, 3, v{vZ}")
    e(f"    v_add_u32 v{vY}, s33, v{vZ}")
    e(f"    v_mov_b32 v{vT}, 0")
    e(f"    s_mov_b64 exec, 1")
    e(f"    global_store_dword v{vD}, v{vA}, s[18:19] sc1")
    e(f"    s_mov_b64 exec, -1")
    e(f"    global_load_dwordx4 {rr(vS,4)}, v{vX}, s[10:11]")
    e(f"    global_load_dwordx2 {rr(vS+4,2)}, v{vY}, s[12:13]")
    e(f"    global_load_ushort v{vS+6}, v{vT}, s[14:15]")
    e("    s_branch L_start")
    e("L_tree:")
    e(f"    s_waitcnt vmcnt({A - qpos})")
    e(f"    v_mfma_f32_16x16x32_bf16 {rr(vS+8,4)}, {rr(vS,4)}, {rr(vQ,4)}, 0")
    e(f"    v_lshlrev_b32 v{vA}, 16, v{vS+6}")
    e(f"    v_sub_f32 v{vA}, 1.0, v{vA}")
    e(f"    v_mul_f32 v{vm}, 0x{f2u(-1e9*LOG2E):08x}, v{vA}   ; (1-mask)*(-1e9)*log2e")
    e(f"    v_lshlrev_b32 v{vO}, 16, v{vS+4}")
    e(f"    v_and_b32 v{vO+1}, 0xffff0000, v{vS+4}")
    e(f"    v_lshlrev_b32 v{vO+2}, 16, v{vS+5}")
    e(f"    v_and_b32 v{vO+3}, 0xffff0000, v{vS+5}")
    e(f"    s_nop 0")
    for j in range(4):
        e(f"    v_fmac_f32_dpp v{vm}, v{vS+8+j}, v{vC} quad_perm:[{j},{j},{j},{j}] row_mask:0xf bank_mask:0xf")
        e("    s_nop 1")
    e("    s_branch L_treedone")
    e("L_waittag:                                         ; the combining workgroup had not started yet when the tag was read")
    e(f"    global_load_dword v7, v{vD}, s[18:19] sc1")
    e("    s_waitcnt vmcnt(0)")
    e(f"    v_readfirstlane_b32 s{sTag}, v7")
    e(f"    s_sub_u32 s59, s59, 1")
    e(f"    s_cbranch_scc1 L_havetag")
    e(f"    s_cmp_eq_u32 s{sTag}, 0")
    e(f"    s_cbranch_scc1 L_waittag")
    e("    s_branch L_havetag")
    e("L_fin:")
    if stamp:
        e("    s_waitcnt lgkmcnt(0)")
        e(f"    s_mul_i32 s34, s2, {NW}")
        e(f"    s_add_u32 s34, s34, s{sWave}")
        e(f"    s_mul_i32 s34, s34, {8*NST}")
        e(f"    s_add_u32 s34, s34, 0x100000")
        e(f"    v_mov_b32 v126, s34")
        for k in range(2 * NST): e(f"    v_mov_b32 v{100+k}, s{60+k}")
        e("    s_mov_b64 exec, 1")
        for k in range(NST // 2): e(f"    global_store_dwordx4 v126, v[{100+4*k}:{103+4*k}], s[20:21] offset:{16*k}")
    e("L_end:")
    e("    s_endpgm")
    e('.section .rodata,"a"'); e(".p2align 6"); e(f".amdhsa_kernel {KNAME}")
    e(f"  .amdhsa_next_free_vgpr {nvgpr}")
    e(f"  .amdhsa_next_free_sgpr {88 if stamp else 60}")
    e(f"  .amdhsa_accum_offset {nvgpr}")
    e("  .amdhsa_group_segment_fixed_size 0"); e("  .amdhsa_kernarg_size 72"); e("  .amdhsa_user_sgpr_count 2")
    e("  .amdhsa_user_sgpr_kernarg_segment_ptr 1"); e("  .amdhsa_system_sgpr_workgroup_id_x 1")
    e("  .amdhsa_float_denorm_mode_32 3")
    e(".end_amdhsa_kernel")
    return "\n".join(o) + "\n"

if __name__ == "__main__":
    ap = argparse.ArgumentParser()
    ap.add_argument("--lay", default="iiwwttststsst"); ap.add_argument("--l1", default="55565556"); ap.add_argument("--l2", default="55565556")
    ap.add_argument("--pol", default="nt"); ap.add_argument("--stamp", action="store_true"); ap.add_argument("--map", default="sm")
    ap.add_argument("--qpos", type=int, default=1); ap.add_argument("--outpol", default="")
    ap.add_argument("--warm", type=int, default=2)
    ap.add_argument("--pbar", default="13")
    ap.add_argument("--spol", default="")
    ap.add_argument("--lbar", default="")
    ap.add_argument("-o", default="-")
    a = ap.parse_args()
    s = gen(a.lay, a.l1, a.l2, a.pol, a.stamp, a.map, a.qpos, a.outpol, a.warm, pbar=a.pbar, spol=a.spol, lbar=a.lbar)
    (sys.stdout if a.o == "-" else open(a.o, "w")).write(s)
```
